```python
import torch

def _softmax(x, axis=-1):
    return torch.softmax(x, dim=axis)
def _gelu(x):
    return torch.nn.functional.gelu(x, approximate="tanh")
def _silu(x):
    return torch.nn.functional.silu(x)
def _sigmoid(x):
    return torch.sigmoid(x)
def _layernorm(x, axis=-1, eps=1e-5):
    m = x.mean(dim=axis, keepdim=True)
    v = x.var(dim=axis, keepdim=True, unbiased=False)
    return (x - m) / torch.sqrt(v + eps)
def _scatter_add(tgt, idx, src, axis=0):
    return tgt.clone().index_add_(axis, idx, src)
def _segment_sum(src, seg, n):
    out = torch.zeros((n,) + src.shape[1:], dtype=src.dtype)
    return out.index_add_(0, seg, src)
def _pad(x, pw):
    flat = tuple(v for pair in reversed(pw) for v in pair)
    return torch.nn.functional.pad(x, flat)

kernel_name = 'sequential_preLN__spectral_gfnet__dense_activation_mish__prompt'

def setup_inputs():

    _w = (lambda a: (lambda t: t.to(torch.bfloat16) if t.is_floating_point() else t)(torch.as_tensor(a)))
    def _A_setup():
        B, S, D = 1, 2048, 512
        Df = D // 2 + 1
        return {
            "x": _w((lambda *s: torch.randn(*s, dtype=torch.bfloat16) * 0.05)(B, S, D)),
            "w_r": _w((lambda *s: torch.randn(*s, dtype=torch.bfloat16) * 0.4)(S, Df) * 0.02),
            "w_i": _w((lambda *s: torch.randn(*s, dtype=torch.bfloat16) * 0.4)(S, Df) * 0.02),
        }
    _A_in = _A_setup()

    def _B_setup():
        B, S, D, F = 1, 2048, 512, 1792
        return {
            "x": _w((lambda *s: torch.randn(*s, dtype=torch.bfloat16) * 0.05)(B, S, D)),
            "w1": _w((lambda *s: torch.randn(*s, dtype=torch.bfloat16) * 0.8)(D, F) * (D ** -0.5)),
            "b1": _w((lambda *s: torch.randn(*s, dtype=torch.bfloat16) * 0.2)(F)),
            "w2": _w((lambda *s: torch.randn(*s, dtype=torch.bfloat16) * 0.1)(F, D) * (F ** -0.5)),
        }
    _B_in = _B_setup()

    return {
        "A_x": _A_in["x"],
        "A_w_r": _A_in["w_r"],
        "A_w_i": _A_in["w_i"],
        "B_x": _B_in["x"],
        "B_w1": _B_in["w1"],
        "B_b1": _B_in["b1"],
        "B_w2": _B_in["w2"],
    }

def reference(A_x, A_w_r, A_w_i, B_x, B_w1, B_b1, B_w2):
    def _A_ref(x, w_r, w_i):
        B, S, D = x.shape
        X = (lambda x, axes=(-2,-1): torch.fft.rfft2(x.float(), dim=axes))(x, axes=(-2, -1))
        W = w_r + 1j * w_i
        X = X * W
        y = (lambda x, s, axes=(-2,-1): torch.fft.irfft2(x, s=s, dim=axes).to(torch.bfloat16))(X, (S, D), axes=(-2, -1))
        return y

    def _B_ref(x, w1, b1, w2):
        h = torch.einsum("bsd,df->bsf", x, w1) + b1
        sp = torch.log1p(torch.exp(-torch.abs(h))) + torch.where(h > 0, h, torch.zeros_like(h))
        act = h * torch.tanh(sp)
        return torch.einsum("bsf,fd->bsd", act, w2)

    x = A_x
    h = x + _A_ref(_layernorm(x, axis=-1), A_w_r, A_w_i)
    h2 = h + _B_ref(_layernorm(h, axis=-1), B_w1, B_b1, B_w2)
    return h2
```

```python
import re

REG_RE = re.compile(r'^(-|\|)?([vas])(\d+)\|?$')
RNG_RE = re.compile(r'^(-|\|)?([vas])\[(\d+):(\d+)\]\|?$')


def vr(a, n=1):
    return "v%d" % a if n == 1 else "v[%d:%d]" % (a, a + n - 1)


def ar(a, n=1):
    return "a%d" % a if n == 1 else "a[%d:%d]" % (a, a + n - 1)


def sr(a, n=1):
    return "s%d" % a if n == 1 else "s[%d:%d]" % (a, a + n - 1)


def parse_reg(tok):
    tok = tok.strip()
    if tok.startswith("abs(") and tok.endswith(")"):
        tok = tok[4:-1]
    if tok.startswith("-abs(") and tok.endswith(")"):
        tok = tok[5:-1]
    m = REG_RE.match(tok)
    if m:
        return {(m.group(2), int(m.group(3)))}
    m = RNG_RE.match(tok)
    if m:
        return {(m.group(2), i) for i in range(int(m.group(3)), int(m.group(4)) + 1)}
    if tok in ("vcc", "vcc_lo", "vcc_hi"):
        return {("x", "vcc")}
    if tok in ("exec", "exec_lo", "exec_hi"):
        return {("x", "exec")}
    if tok == "m0":
        return {("x", "m0")}
    return set()


def split_ops(s):
    out, depth, cur = [], 0, ""
    for ch in s:
        if ch in "[(":
            depth += 1
        if ch in "])":
            depth -= 1
        if ch == "," and depth == 0:
            out.append(cur.strip())
            cur = ""
        else:
            cur += ch
    if cur.strip():
        out.append(cur.strip())
    return out


TRANS = ("v_exp_f32", "v_log_f32", "v_rcp_f32", "v_rsq_f32", "v_sqrt_f32", "v_sin_f32", "v_cos_f32",
         "v_rcp_iflag_f32", "v_exp_f16", "v_rcp_f16")
NO_DST_SALU = ("s_cmp", "s_cbranch", "s_waitcnt", "s_barrier", "s_nop", "s_setprio", "s_sleep", "s_endpgm",
               "s_branch", "s_bitcmp", "s_setpc", "s_setreg", "s_sendmsg")


class Ins:
    __slots__ = ("text", "mn", "ops", "mods", "w", "r", "cls", "passes", "srcc", "wide_store", "dpp", "sdwa_dst")

    def __init__(self, text):
        self.text = text
        t = text.strip()
        parts = t.split(None, 1)
        self.mn = mn = parts[0]
        rest = parts[1] if len(parts) > 1 else ""
        ops = split_ops(rest)
        mods = ""
        if ops:
            last = ops[-1]
            depth = 0
            cut = None
            for i, ch in enumerate(last):
                if ch in "[(":
                    depth += 1
                if ch in "])":
                    depth -= 1
                if ch == " " and depth == 0:
                    cut = i
                    break
            if cut is not None:
                mods = last[cut + 1:]
                ops[-1] = last[:cut]
        self.ops, self.mods = ops, mods
        self.w, self.r = set(), set()
        self.cls = "other"
        self.passes = 0
        self.srcc = set()
        self.wide_store = False
        self.dpp = ("dpp" in mn) or any(k in mods for k in ("row_shr", "row_shl", "row_ror", "quad_perm", "row_mirror",
                                                           "row_half_mirror", "row_bcast", "row_newbcast"))
        self.sdwa_dst = "dst_sel:WORD" in mods or "dst_sel:BYTE" in mods
        R = [parse_reg(o) for o in ops]
        base = mn.replace("_e32", "").replace("_e64", "").replace("_dpp", "").replace("_sdwa", "")
        if mn.startswith("v_mfma"):
            self.cls = "mfma"
            self.w = R[0]
            self.r = R[1] | R[2] | R[3]
            self.srcc = R[3]
            if "32x32x16" in mn or "32x32x8" in mn:
                self.passes = 8
            elif "16x16x32" in mn or "16x16x16" in mn:
                self.passes = 4
            else:
                raise ValueError("unknown mfma " + mn)
        elif mn.startswith("v_"):
            self.cls = "trans" if base in TRANS else "valu"
            if base.startswith("v_dot2"):
                self.cls = "dot"
            if base.startswith("v_cmp"):
                self.w = R[0]
                self.r = set().union(*R[1:])
            elif base in ("v_permlane16_swap_b32", "v_permlane32_swap_b32"):
                self.w = R[0] | R[1]
                self.r = R[0] | R[1]
                self.cls = "permlane"
            elif base in ("v_add_co_u32", "v_sub_co_u32"):
                self.w = R[0] | R[1]
                self.r = set().union(*R[2:])
            elif base in ("v_addc_co_u32", "v_subb_co_u32"):
                self.w = R[0] | R[1]
                self.r = set().union(*R[2:])
            elif base in ("v_fmac_f32", "v_dot2c_f32_bf16", "v_pk_fmac_f16", "v_writelane_b32"):
                self.w = R[0]
                self.r = set().union(*R)
            else:
                self.w = R[0]
                self.r = set().union(*R[1:]) if len(R) > 1 else set()
                if self.dpp:
                    self.r |= R[0]
                if "dst_unused:UNUSED_PRESERVE" in mods:
                    self.r |= R[0]
            if base in ("v_readfirstlane_b32", "v_readlane_b32"):
                self.cls = "readlane"
            self.r |= {("x", "exec")}
        elif mn.startswith("global_load_lds") or (mn.startswith("buffer_load") and " lds" in (" " + mods)):
            self.cls = "vmem_lds"
            self.r = set().union(*R) | {("x", "m0")}
        elif mn.startswith("global_load") or mn.startswith("buffer_load"):
            self.cls = "vmem_load"
            self.w = R[0]
            self.r = set().union(*R[1:])
            if "d16" in mn:
                self.r |= R[0]
        elif mn.startswith("global_store") or mn.startswith("buffer_store"):
            self.cls = "vmem_store"
            self.r = set().union(*R)
            self.wide_store = mn.endswith("x4") or mn.endswith("x3")
        elif mn.startswith("global_atomic") or mn.startswith("buffer_atomic"):
            self.cls = "vmem_store"
            if "sc0" in mods:
                self.cls = "vmem_load"
                self.w = R[0]
                self.r = set().union(*R[1:])
            else:
                self.r = set().union(*R)
        elif mn.startswith("buffer_wbl2") or mn.startswith("buffer_inv"):
            self.cls = "vmem_store"
        elif mn.startswith("ds_read") or mn.startswith("ds_bpermute") or mn.startswith("ds_swizzle") or mn.startswith("ds_permute"):
            self.cls = "ds_read"
            self.w = R[0]
            self.r = set().union(*R[1:])
        elif mn.startswith("ds_"):
            self.cls = "ds_write"
            self.r = set().union(*R)
        elif mn.startswith("s_load") or mn.startswith("s_memtime") or mn.startswith("s_memrealtime"):
            self.cls = "smem"
            self.w = R[0]
            self.r = set().union(*R[1:]) if len(R) > 1 else set()
        elif mn.startswith("s_"):
            self.cls = "salu"
            if any(mn.startswith(p) for p in NO_DST_SALU):
                self.r = set().union(*R) if R else set()
            else:
                self.w = R[0] if R else set()
                self.r = set().union(*R[1:]) if len(R) > 1 else set()
                if mn in ("s_and_saveexec_b64", "s_or_saveexec_b64"):
                    self.w |= {("x", "exec")}
                    self.r |= {("x", "exec")}
                if mn in ("s_addk_i32", "s_mulk_i32"):
                    self.r |= R[0]
        else:
            raise ValueError("unknown instruction: " + text)

    def is_valu(self):
        return self.cls in ("valu", "trans", "permlane", "readlane", "dot")


class Asm:
    def __init__(self):
        self.out = []
        self.hist = []
        self.pos = 0
        self.vmq = []
        self.lgq = []
        self.auto = True
        self.ninstr = 0

    def raw(self, text):
        self.out.append(text)

    def c(self, text):
        self.out.append("  ; " + text)

    def label(self, name, flush=True):
        if flush:
            self.flush_hazards()
        self.out.append(name + ":")

    def save(self):
        return ([list(h) for h in self.hist], self.pos, [set(x) for x in self.vmq], [(set(a), b) for a, b in self.lgq])

    def restore(self, st):
        self.hist = [list(h) for h in st[0]]
        self.pos = st[1]
        self.vmq = [set(x) for x in st[2]]
        self.lgq = [(set(a), b) for a, b in st[3]]

    def _emit(self, text):
        self.out.append("  " + text)
        self.ninstr += 1

    def nop(self, n):
        while n > 0:
            k = min(n, 16)
            self._emit("s_nop %d" % (k - 1))
            self.pos += k
            n -= k

    def flush_hazards(self):
        need = 0
        for ins, p in self.hist:
            d = self.pos - p - 1
            if ins.cls == "mfma":
                req = 8 if ins.passes == 4 else 12
            elif ins.is_valu():
                req = 5 if any(k in ("s", "x") for k, _ in ins.w) else (3 if ins.cls == "dot" else 2)
            elif ins.cls == "vmem_store" and ins.wide_store:
                req = 2
            elif ins.cls == "salu" and ("x", "m0") in ins.w:
                req = 1
            else:
                req = 0
            need = max(need, req - d)
        if need > 0:
            self.nop(need)
        self.hist = []

    def waitcnt(self, vm=None, lgkm=None):
        parts = []
        if vm is not None:
            vm = min(vm, 63)
            parts.append("vmcnt(%d)" % vm)
            if len(self.vmq) > vm:
                self.vmq = self.vmq[len(self.vmq) - vm:] if vm > 0 else []
        if lgkm is not None:
            lgkm = min(lgkm, 15)
            parts.append("lgkmcnt(%d)" % lgkm)
            if lgkm == 0:
                self.lgq = []
            elif len(self.lgq) > lgkm:
                assert not any(s for _, s in self.lgq), "counted lgkm wait with smem outstanding"
                self.lgq = self.lgq[len(self.lgq) - lgkm:]
        self._emit("s_waitcnt " + " ".join(parts))
        self.pos += 1

    def _auto_wait(self, ins):
        touch = ins.r | ins.w
        vm_need = None
        for i in range(len(self.vmq) - 1, -1, -1):
            if self.vmq[i] & touch:
                vm_need = len(self.vmq) - 1 - i
                break
        lg_need = None
        for i in range(len(self.lgq) - 1, -1, -1):
            if self.lgq[i][0] & touch:
                lg_need = len(self.lgq) - 1 - i
                break
        if lg_need is not None and any(s for _, s in self.lgq):
            lg_need = 0
        if vm_need is not None or lg_need is not None:
            self.waitcnt(vm_need, lg_need)

    def _hazard_need(self, ins):
        need = 0
        for p_ins, p in self.hist:
            d = self.pos - p - 1
            req = 0
            pw = p_ins.w
            if p_ins.cls == "mfma":
                big = p_ins.passes == 8
                if ins.cls == "mfma":
                    if pw & ins.srcc:
                        if pw == ins.srcc and ins.passes == p_ins.passes:
                            req = max(req, 0)
                        else:
                            req = max(req, 10 if big else 6)
                    ab = parse_reg(ins.ops[1]) | parse_reg(ins.ops[2])
                    if pw & ab:
                        req = max(req, 12 if big else 8)
                    if (pw & ins.w) and not (pw == ins.srcc and ins.w == pw):
                        req = max(req, 10 if big else 6)
                else:
                    if pw & (ins.r | ins.w):
                        req = max(req, 12 if big else 8)
                    if ins.is_valu() and (p_ins.srcc & ins.w):
                        req = max(req, 7 if big else 3)
                    if ins.cls in ("ds_read", "vmem_load") and (p_ins.srcc & ins.w):
                        req = max(req, 7 if big else 3)
            elif p_ins.is_valu():
                vw = {x for x in pw if x[0] in ("v", "a")}
                sw = {x for x in pw if x[0] == "s" or x == ("x", "vcc")}
                if ins.cls == "mfma" and (vw & ins.r):
                    req = max(req, 2)
                if ins.cls == "permlane" and (vw & ins.r):
                    req = max(req, 2)
                if ins.dpp and ins.is_valu() and (vw & ins.r):
                    req = max(req, 2)
                if ins.cls == "readlane" and (vw & ins.r):
                    req = max(req, 1)
                if p_ins.cls == "trans" and ins.is_valu() and ins.cls != "trans" and (vw & ins.r):
                    req = max(req, 1)
                if p_ins.cls == "trans" and ins.cls in ("trans", "mfma") and (vw & ins.r):
                    req = max(req, 1 if ins.cls == "trans" else 2)
                if p_ins.cls == "dot":
                    if ins.cls == "dot" and ins.mn == p_ins.mn:
                        ab = set().union(*[parse_reg(o) for o in ins.ops[1:3]])
                        if vw & ab:
                            req = max(req, 3)
                    elif vw & (ins.r | ins.w):
                        req = max(req, 3)
                if p_ins.sdwa_dst and ins.is_valu() and (vw & (ins.r | ins.w)):
                    req = max(req, 1)
                if sw:
                    if ins.cls.startswith("vmem") and (sw & ins.r):
                        req = max(req, 5)
                    if ins.is_valu() and (sw & ins.r):
                        req = max(req, 2)
                    if ins.cls == "readlane" and (sw & ins.r):
                        req = max(req, 4)
                    if ins.cls in ("salu", "smem") and (sw & ins.r):
                        req = max(req, 4)
                if ("x", "exec") in pw:
                    if ins.cls == "mfma":
                        req = max(req, 4)
                    if ins.dpp:
                        req = max(req, 5)
            elif p_ins.cls == "vmem_store" and p_ins.wide_store:
                data = parse_reg(p_ins.ops[1]) if p_ins.mn.startswith("global") else parse_reg(p_ins.ops[0])
                if data & ins.w:
                    req = max(req, 2)
            elif p_ins.cls == "salu":
                if ("x", "m0") in pw and ins.cls == "vmem_lds":
                    req = max(req, 1)
                if ("x", "exec") in pw and ins.cls == "mfma":
                    req = max(req, 4)
                if ("x", "exec") in pw and ins.dpp:
                    req = max(req, 5)
            need = max(need, req - d)
        return need

    def I(self, text):
        if text.startswith("s_waitcnt"):
            m = re.search(r"vmcnt\((\d+)\)", text)
            l = re.search(r"lgkmcnt\((\d+)\)", text)
            self.waitcnt(int(m.group(1)) if m else None, int(l.group(1)) if l else None)
            return
        ins = Ins(text)
        if ins.mn == "s_nop":
            self._emit(text)
            self.pos += int(ins.ops[0]) + 1
            return
        if self.auto:
            self._auto_wait(ins)
            need = self._hazard_need(ins)
            if need > 0:
                self.nop(need)
        self._emit(text)
        if ins.cls in ("vmem_load",):
            self.vmq.append(set(ins.w))
        elif ins.cls in ("vmem_lds", "vmem_store"):
            self.vmq.append(set())
        elif ins.cls == "ds_read":
            self.lgq.append((set(ins.w), False))
        elif ins.cls == "ds_write":
            self.lgq.append((set(), False))
        elif ins.cls == "smem":
            self.lgq.append((set(ins.w), True))
        if len(self.vmq) > 63:
            self.vmq = self.vmq[-63:]
        self.hist.append([ins, self.pos])
        self.pos += 1
        self.hist = [h for h in self.hist if self.pos - h[1] < 24]
        if ins.mn.startswith("s_cbranch") or ins.mn in ("s_branch", "s_setpc_b64"):
            pass

    def text(self):
        return "\n".join(self.out) + "\n"
```

```python
import math
from gen import *

LOG2E = math.log2(math.e)
LN2 = math.log(2.0)


def mfma32(a, d, A, B, C=None, aA=False):
    c = "0" if C is None else vr(C, 16)
    A_ = ar(A, 4) if aA else vr(A, 4)
    a.I("v_mfma_f32_32x32x16_bf16 %s, %s, %s, %s" % (vr(d, 16), A_, vr(B, 4), c))


def p2(a, sc=""):
    R = Regs(4)
    vT = R.alloc(8)
    vC = R.alloc(8, 4)
    vS = R.alloc(8, 4)
    vN = R.alloc(8, 4)
    vW = R.alloc(16, 4)
    vRaw = R.alloc(32, 4)
    vOp = R.alloc(32, 4)
    vY = R.alloc(16, 4)
    vWA = R.alloc(8)
    vTA = R.alloc(4)
    vZ = R.alloc(4)
    a.c("P2: W loads")
    for i in range(16):
        a.I("v_mov_b32 %s, 0" % vr(vW + i))
    a.I("s_lshr_b32 s%d, s%d, 1" % (S_T0, S_BLK))
    a.I("s_lshl_b32 s%d, s%d, 6" % (S_T0, S_T0))
    a.I("s_and_b32 s%d, s%d, 1" % (S_T0 + 1, S_BLK))
    a.I("s_lshl_b32 s%d, s%d, 1" % (S_T0 + 1, S_T0 + 1))
    a.I("s_add_u32 s%d, s%d, s%d" % (S_T0, S_T0, S_T0 + 1))
    a.I("v_and_b32 %s, 7, v%d" % (vr(vT), V_L15))
    a.I("v_lshlrev_b32 %s, 3, %s" % (vr(vT), vr(vT)))
    a.I("v_lshrrev_b32 %s, 3, v%d" % (vr(vT + 1), V_L15))
    a.I("v_add3_u32 %s, %s, %s, s%d" % (vr(vT), vr(vT), vr(vT + 1), S_T0))
    a.I("v_add_u32 %s, 4, %s" % (vr(vT + 1), vr(vT)))
    a.I("v_cmp_eq_u32 vcc, 0, %s" % vr(vT))
    a.I("v_mov_b32 %s, 0x100" % vr(vT + 2))
    a.I("v_cndmask_b32 %s, %s, %s, vcc" % (vr(vT), vr(vT), vr(vT + 2)))
    a.I("s_lshl_b32 s%d, s%d, 9" % (S_T0, S_WAVE))
    a.I("s_add_u32 s%d, s%d, s%d" % (S_T0, S_T0, S_K1))
    a.I("v_lshl_add_u32 %s, v%d, 7, s%d" % (vr(vT + 2), V_G, S_T0))
    a.I("v_mul_u32_u24 %s, 514, %s" % (vr(vT + 2), vr(vT + 2)))
    for X in range(2):
        a.I("v_lshl_add_u32 %s, %s, 1, %s" % (vr(vWA + 4 * X), vr(vT + X), vr(vT + 2)))
        for r in range(1, 4):
            a.I("v_add_u32 %s, %d, %s" % (vr(vWA + 4 * X + r), 32 * 514 * r, vr(vWA + 4 * X)))
    for X in range(2):
        for r in range(4):
            a.I("global_load_short_d16_hi %s, %s, s[%d:%d]" % (vr(vW + 4 * X + r), vr(vWA + 4 * X + r), S_WR, S_WR + 1))
            a.I("global_load_short_d16_hi %s, %s, s[%d:%d]" % (vr(vW + 8 + 4 * X + r), vr(vWA + 4 * X + r), S_WI, S_WI + 1))
    a.c("P2: F64 table a = 16w + l15, b = 32ks + 8g + e")
    vJ, vB = vT + 6, vT + 7
    a.I("s_lshl_b32 s%d, s%d, 4" % (S_T0, S_WAVE))
    a.I("v_add_u32 %s, s%d, v%d" % (vr(vJ), S_T0, V_L15))
    a.I("v_cvt_f32_u32 %s, %s" % (vr(vJ), vr(vJ)))
    a.I("v_mul_f32 %s, %s, %s" % (vr(vJ), fhex(1.0 / 64), vr(vJ)))
    a.I("v_lshlrev_b32 %s, 3, v%d" % (vr(vB), V_G))
    a.I("v_cvt_f32_u32 %s, %s" % (vr(vB), vr(vB)))
    a.I("v_mul_f32 %s, %s, %s" % (vr(vB), vr(vJ), vr(vB)))
    for ks in range(2):
        sincos_pack(a, vT, vJ, vB, [32 * ks + e for e in range(8)], vC + 4 * ks, vS + 4 * ks, False, vN + 4 * ks)
    a.c("P2: T loads")
    a.I("s_lshl_b32 s%d, s%d, 16" % (S_T0, S_K1))
    a.I("s_lshl_b32 s%d, s%d, 7" % (S_T0 + 1, S_BLK))
    a.I("s_add_u32 s%d, s%d, s%d" % (S_T0, S_T0, S_T0 + 1))
    a.I("v_lshlrev_b32 %s, 13, v%d" % (vr(vTA), V_G))
    a.I("v_lshl_add_u32 %s, v%d, 3, %s" % (vr(vTA), V_L15, vr(vTA)))
    a.I("v_add_u32 %s, s%d, %s" % (vr(vTA), S_T0, vr(vTA)))
    a.I("v_add_u32 %s, %d, %s" % (vr(vTA + 1), 4096, vr(vTA)))
    a.I("v_add_u32 %s, %d, %s" % (vr(vTA + 2), 32768, vr(vTA)))
    a.I("v_add_u32 %s, %d, %s" % (vr(vTA + 3), 32768 + 4096, vr(vTA)))
    for ks in range(2):
        for e in range(8):
            a.I("global_load_dwordx2 %s, %s, s[%d:%d] offset:%d %s" % (
                vr(vRaw + 16 * ks + 2 * e, 2), vr(vTA + 2 * ks + (e >> 2)), S_T, S_T + 1, (e & 3) * 1024, sc))
    for ks in range(2):
        for X in range(2):
            for i in range(4):
                lo = vRaw + 16 * ks + 2 * (2 * i) + X
                hi = vRaw + 16 * ks + 2 * (2 * i + 1) + X
                a.I("v_perm_b32 %s, %s, %s, s%d" % (vr(vOp + 8 * X + 4 * ks + i), vr(hi), vr(lo), S_PLO))
                a.I("v_perm_b32 %s, %s, %s, s%d" % (vr(vOp + 16 + 8 * X + 4 * ks + i), vr(hi), vr(lo), S_PHI))
    for X in range(2):
        Tr = lambda ks: vOp + 8 * X + 4 * ks
        Ti = lambda ks: vOp + 16 + 8 * X + 4 * ks
        yr, yi = vY + 4 * X, vY + 8 + 4 * X
        mfma16(a, yr, vC, Tr(0))
        mfma16(a, yi, vC, Ti(0))
        mfma16(a, yr, vC + 4, Tr(1), yr)
        mfma16(a, yi, vC + 4, Ti(1), yi)
        mfma16(a, yr, vS, Ti(0), yr)
        mfma16(a, yi, vN, Tr(0), yi)
        mfma16(a, yr, vS + 4, Ti(1), yr)
        mfma16(a, yi, vN + 4, Tr(1), yi)
    a.I("v_lshlrev_b32 %s, 1, v%d" % (vr(vZ), V_L15))
    a.I("v_mul_u32_u24 %s, %d, %s" % (vr(vZ), ZP, vr(vZ)))
    a.I("v_lshl_add_u32 %s, v%d, 3, %s" % (vr(vZ), V_G, vr(vZ)))
    a.I("s_lshl_b32 s%d, s%d, 5" % (S_T0, S_WAVE))
    a.I("s_add_u32 s%d, s%d, %d" % (S_T0, S_T0, L_Z))
    a.I("v_add_u32 %s, s%d, %s" % (vr(vZ), S_T0, vr(vZ)))
    zt = vRaw
    for X in range(2):
        yr, yi = vY + 4 * X, vY + 8 + 4 * X
        zr, zi = zt + 16 * X, zt + 16 * X + 4
        for r in range(4):
            a.I("v_mul_f32 %s, %s, %s" % (vr(zr + r), vr(yr + r), vr(vW + 4 * X + r)))
            a.I("v_mul_f32 %s, %s, %s" % (vr(zi + r), vr(yr + r), vr(vW + 8 + 4 * X + r)))
        for r in range(4):
            a.I("v_fma_f32 %s, -%s, %s, %s" % (vr(zr + r), vr(yi + r), vr(vW + 8 + 4 * X + r), vr(zr + r)))
            a.I("v_fma_f32 %s, %s, %s, %s" % (vr(zi + r), vr(yi + r), vr(vW + 4 * X + r), vr(zi + r)))
        pk = zt + 16 * X + 8
        a.I("v_cvt_pk_bf16_f32 %s, %s, %s" % (vr(pk), vr(zr), vr(zr + 1)))
        a.I("v_cvt_pk_bf16_f32 %s, %s, %s" % (vr(pk + 1), vr(zr + 2), vr(zr + 3)))
        a.I("v_cvt_pk_bf16_f32 %s, %s, %s" % (vr(pk + 2), vr(zi), vr(zi + 1)))
        a.I("v_cvt_pk_bf16_f32 %s, %s, %s" % (vr(pk + 3), vr(zi + 2), vr(zi + 3)))
        a.I("ds_write_b64 %s, %s offset:%d" % (vr(vZ), vr(pk, 2), X * ZP))
        a.I("ds_write_b64 %s, %s offset:%d" % (vr(vZ), vr(pk + 2, 2), X * ZP + 128))
    a.I("s_waitcnt lgkmcnt(0)")
    a.I("s_barrier")
    a.I("v_mul_u32_u24 %s, %d, v%d" % (vr(vZ + 1), ZP, V_L15))
    a.I("v_lshl_add_u32 %s, v%d, 4, %s" % (vr(vZ + 1), V_G, vr(vZ + 1)))
    a.I("v_add_u32 %s, %d, %s" % (vr(vZ + 1), L_Z, vr(vZ + 1)))
    zf = vOp
    for mt in range(2):
        for ks in range(2):
            a.I("ds_read_b128 %s, %s offset:%d" % (vr(zf + 8 * mt + 4 * ks, 4), vr(vZ + 1), mt * 16 * ZP + ks * 64))
            a.I("ds_read_b128 %s, %s offset:%d" % (vr(zf + 16 + 8 * mt + 4 * ks, 4), vr(vZ + 1), mt * 16 * ZP + 128 + ks * 64))
    a.I("s_lshl_b32 s%d, s%d, 19" % (S_T0, S_WAVE))
    a.I("s_lshl_b32 s%d, s%d, 10" % (S_T0 + 1, S_K1))
    a.I("s_add_u32 s%d, s%d, s%d" % (S_T0, S_T0, S_T0 + 1))
    a.I("s_lshl_b32 s%d, s%d, 7" % (S_T0 + 1, S_BLK))
    a.I("s_add_u32 s%d, s%d, s%d" % (S_T0, S_T0, S_T0 + 1))
    a.I("v_lshlrev_b32 %s, 15, v%d" % (vr(vZ + 2), V_L15))
    a.I("v_lshl_add_u32 %s, v%d, 4, %s" % (vr(vZ + 2), V_G, vr(vZ + 2)))
    a.I("v_add_u32 %s, s%d, %s" % (vr(vZ + 2), S_T0, vr(vZ + 2)))
    for mt in range(2):
        Zr = lambda ks: zf + 8 * mt + 4 * ks
        Zi = lambda ks: zf + 16 + 8 * mt + 4 * ks
        ur, ui = vY + 4 * mt, vY + 8 + 4 * mt
        mfma16(a, ur, Zr(0), vC)
        mfma16(a, ui, Zr(0), vS)
        mfma16(a, ur, Zr(1), vC + 4, ur)
        mfma16(a, ui, Zr(1), vS + 4, ui)
        mfma16(a, ur, Zi(0), vN, ur)
        mfma16(a, ui, Zi(0), vC, ui)
        mfma16(a, ur, Zi(1), vN + 4, ur)
        mfma16(a, ui, Zi(1), vC + 4, ui)
    for mt in range(2):
        ur, ui = vY + 4 * mt, vY + 8 + 4 * mt
        o = vRaw + 4 * mt
        for r in range(4):
            a.I("v_cvt_pk_bf16_f32 %s, %s, %s" % (vr(o + r), vr(ur + r), vr(ui + r)))
        a.I("global_store_dwordx4 %s, %s, s[%d:%d] offset:%d %s" % (vr(vZ + 2), vr(o, 4), S_U, S_U + 1, mt * 64, sc))


def p3_tables(a, vT, vHr, vHi, vHn, vGc, vGs):
    vJ, vB = vT + 6, vT + 7
    a.c("P3: H table: s1 = 16nt + l15, k1 = 8g + e")
    for nt in range(2):
        a.I("v_add_u32 %s, %d, v%d" % (vr(vJ), 16 * nt, V_L15))
        a.I("v_lshl_add_u32 %s, %s, 6, s%d" % (vr(vJ), vr(vJ), S_S2))
        a.I("v_cvt_f32_u32 %s, %s" % (vr(vJ), vr(vJ)))
        a.I("v_mul_f32 %s, %s, %s" % (vr(vJ), fhex(1.0 / 2048), vr(vJ)))
        a.I("v_lshlrev_b32 %s, 3, v%d" % (vr(vB), V_G))
        a.I("v_cvt_f32_u32 %s, %s" % (vr(vB), vr(vB)))
        a.I("v_mul_f32 %s, %s, %s" % (vr(vB), vr(vJ), vr(vB)))
        sincos_pack(a, vT, vJ, vB, list(range(8)), vHr + 4 * nt, vHi + 4 * nt, False, vHn + 4 * nt)
    a.c("P3: G table: n = 32qn + 16mt2 + l15 ; j = 64(g>>1) + 8(g&1) + const")
    a.I("s_and_b32 s%d, s%d, 1" % (S_T0, S_WAVE))
    a.I("s_lshl_b32 s%d, s%d, 4" % (S_T0, S_T0))
    a.I("s_lshl_b32 s%d, s%d, 5" % (S_T0 + 1, S_Q))
    a.I("s_add_u32 s%d, s%d, s%d" % (S_T0, S_T0, S_T0 + 1))
    a.I("v_add_u32 %s, s%d, v%d" % (vr(vJ), S_T0, V_L15))
    a.I("v_cvt_f32_u32 %s, %s" % (vr(vJ), vr(vJ)))
    a.I("v_mul_f32 %s, %s, %s" % (vr(vJ), fhex(1.0 / 512), vr(vJ)))
    a.I("v_lshrrev_b32 %s, 1, v%d" % (vr(vB), V_G))
    a.I("v_lshlrev_b32 %s, 6, %s" % (vr(vB), vr(vB)))
    a.I("v_and_b32 %s, 1, v%d" % (vr(vT), V_G))
    a.I("v_lshl_add_u32 %s, %s, 3, %s" % (vr(vB), vr(vT), vr(vB)))
    a.I("v_cvt_f32_u32 %s, %s" % (vr(vB), vr(vB)))
    a.I("v_mul_f32 %s, %s, %s" % (vr(vB), vr(vJ), vr(vB)))
    for c in range(4):
        for ks in range(2):
            Ks = [128 * ks + 16 * (e & 3) + 4 * (e >> 2) + c for e in range(8)]
            sincos_pack(a, vT, vJ, vB, Ks, vGc + 8 * c + 4 * ks, vGs + 8 * c + 4 * ks, True)
    a.I("v_mul_f32 %s, %s, %s" % (vr(vT), fhex(256.0), vr(vJ)))
    a.I("v_cos_f32 %s, %s" % (vr(vT), vr(vT)))
    a.I("v_mul_f32 %s, 0.5, %s" % (vr(vT), vr(vT)))
    a.I("v_cvt_pk_bf16_f32 %s, %s, %s" % (vr(vT), vr(vT), vr(vT)))
    a.I("v_and_b32 %s, 0xffff, %s" % (vr(vT), vr(vT)))
    a.I("v_and_b32 %s, 0xffff0000, %s" % (vr(vT + 1), vr(vGc)))
    a.I("v_or_b32 %s, %s, %s" % (vr(vT), vr(vT), vr(vT + 1)))
    a.I("v_and_b32 %s, 0xffff0000, %s" % (vr(vT + 1), vr(vGs)))
    a.I("v_cmp_eq_u32 vcc, 0, v%d" % V_G)
    a.I("v_cndmask_b32 %s, %s, %s, vcc" % (vr(vGc), vr(vGc), vr(vT)))
    a.I("v_cndmask_b32 %s, %s, %s, vcc" % (vr(vGs), vr(vGs), vr(vT + 1)))


def p3(a, sc=""):
    R = Regs(4)
    vT = R.alloc(8)
    vHr = R.alloc(8, 4)
    vHi = R.alloc(8, 4)
    vHn = R.alloc(8, 4)
    vGc = R.alloc(32, 4)
    vGs = R.alloc(32, 4)
    vRaw = R.alloc(32, 4)
    vOp = R.alloc(32, 4)
    vAcc = R.alloc(64, 4)
    vX = R.alloc(8, 4)
    vAd = R.alloc(6)
    a.c("P3: x residual loads")
    a.I("s_lshr_b32 s%d, s%d, 1" % (S_T0 + 2, S_WAVE))
    a.I("s_and_b32 s%d, s%d, 1" % (S_T0 + 3, S_WAVE))
    a.I("s_lshl_b32 s%d, s%d, 4" % (S_T0, S_T0 + 2))
    a.I("v_add_u32 %s, s%d, v%d" % (vr(vAd), S_T0, V_L15))
    a.I("v_lshl_add_u32 %s, %s, 6, s%d" % (vr(vAd), vr(vAd), S_S2))
    a.I("v_lshlrev_b32 %s, 10, %s" % (vr(vAd), vr(vAd)))
    a.I("v_lshl_add_u32 %s, v%d, 3, %s" % (vr(vAd), V_G, vr(vAd)))
    a.I("s_lshl_b32 s%d, s%d, 6" % (S_T0, S_Q))
    a.I("s_lshl_b32 s%d, s%d, 5" % (S_T0 + 1, S_T0 + 3))
    a.I("s_add_u32 s%d, s%d, s%d" % (S_T0, S_T0, S_T0 + 1))
    a.I("v_add_u32 %s, s%d, %s" % (vr(vAd), S_T0, vr(vAd)))
    for q in range(4):
        a.I("global_load_dwordx2 %s, %s, s[%d:%d] offset:%d" % (vr(vX + 2 * q, 2), vr(vAd), S_X, S_X + 1, q * 256))
    p3_tables(a, vT, vHr, vHi, vHn, vGc, vGs)
    a.c("P3: U loads")
    a.I("s_lshl_b32 s%d, s%d, 15" % (S_T0, S_S2))
    a.I("s_lshl_b32 s%d, s%d, 8" % (S_T0 + 1, S_WAVE))
    a.I("s_add_u32 s%d, s%d, s%d" % (S_T0, S_T0, S_T0 + 1))
    a.I("v_lshlrev_b32 %s, 13, v%d" % (vr(vAd + 1), V_G))
    a.I("v_lshl_add_u32 %s, v%d, 4, %s" % (vr(vAd + 1), V_L15, vr(vAd + 1)))
    a.I("v_add_u32 %s, s%d, %s" % (vr(vAd + 1), S_T0, vr(vAd + 1)))
    a.I("v_add_u32 %s, 4096, %s" % (vr(vAd + 2), vr(vAd + 1)))
    for e in range(8):
        a.I("global_load_dwordx4 %s, %s, s[%d:%d] offset:%d %s" % (
            vr(vRaw + 4 * e, 4), vr(vAd + 1 + (e >> 2)), S_U, S_U + 1, (e & 3) * 1024, sc))
    for mt in range(4):
        for i in range(4):
            lo = vRaw + 4 * (2 * i) + mt
            hi = vRaw + 4 * (2 * i + 1) + mt
            a.I("v_perm_b32 %s, %s, %s, s%d" % (vr(vOp + 4 * mt + i), vr(hi), vr(lo), S_PLO))
            a.I("v_perm_b32 %s, %s, %s, s%d" % (vr(vOp + 16 + 4 * mt + i), vr(hi), vr(lo), S_PHI))
    for nt in range(2):
        for mt in range(4):
            yr = vAcc + 16 * nt + 4 * mt
            yi = vAcc + 32 + 16 * nt + 4 * mt
            Ur, Ui = vOp + 4 * mt, vOp + 16 + 4 * mt
            mfma16(a, yr, Ur, vHr + 4 * nt)
            mfma16(a, yi, Ur, vHi + 4 * nt)
            mfma16(a, yr, Ui, vHn + 4 * nt, yr)
            mfma16(a, yi, Ui, vHr + 4 * nt, yi)
    a.I("v_lshl_add_u32 %s, v%d, 5, v%d" % (vr(vAd + 3), V_G, V_L15))
    a.I("v_mul_u32_u24 %s, %d, %s" % (vr(vAd + 3), ZP, vr(vAd + 3)))
    a.I("s_lshl_b32 s%d, s%d, 5" % (S_T0, S_WAVE))
    a.I("s_add_u32 s%d, s%d, %d" % (S_T0, S_T0, L_Y))
    a.I("v_add_u32 %s, s%d, %s" % (vr(vAd + 3), S_T0, vr(vAd + 3)))
    for nt in range(2):
        for part in range(2):
            src = vAcc + 32 * part + 16 * nt
            pk = vRaw + 16 * nt + 8 * part
            for mt in range(4):
                a.I("v_cvt_pk_bf16_f32 %s, %s, %s" % (vr(pk + 2 * mt), vr(src + 4 * mt), vr(src + 4 * mt + 1)))
                a.I("v_cvt_pk_bf16_f32 %s, %s, %s" % (vr(pk + 2 * mt + 1), vr(src + 4 * mt + 2), vr(src + 4 * mt + 3)))
            for hh in range(2):
                a.I("ds_write_b128 %s, %s offset:%d" % (vr(vAd + 3), vr(pk + 4 * hh, 4), nt * 16 * ZP + part * 128 + hh * 16))
    a.I("s_waitcnt lgkmcnt(0)")
    a.I("s_barrier")
    a.I("s_lshr_b32 s%d, s%d, 1" % (S_T0 + 2, S_WAVE))
    a.I("s_mul_i32 s%d, s%d, %d" % (S_T0, S_T0 + 2, 16 * ZP))
    a.I("s_add_u32 s%d, s%d, %d" % (S_T0, S_T0, L_Y))
    a.I("v_mul_u32_u24 %s, %d, v%d" % (vr(vAd + 4), ZP, V_L15))
    a.I("v_lshl_add_u32 %s, v%d, 4, %s" % (vr(vAd + 4), V_G, vr(vAd + 4)))
    a.I("v_add_u32 %s, s%d, %s" % (vr(vAd + 4), S_T0, vr(vAd + 4)))
    vYf = vAcc
    for c in (0, 2, 1, 3):
        for part in range(2):
            for ks in range(2):
                a.I("ds_read_b128 %s, %s offset:%d" % (vr(vYf + 16 * c + 8 * part + 4 * ks, 4), vr(vAd + 4),
                                                      c * 32 * ZP + part * 128 + ks * 64))
    E0, E2, RR, IPp, IMm = vOp, vOp + 4, vOp + 8, vOp + 12, vOp + 16
    Yr = lambda c, ks: vYf + 16 * c + 4 * ks
    Yi = lambda c, ks: vYf + 16 * c + 8 + 4 * ks
    Gc = lambda c, ks: vGc + 8 * c + 4 * ks
    Gs = lambda c, ks: vGs + 8 * c + 4 * ks
    started = set()

    def mm(d, A, B):
        mfma16(a, d, A, B, d if d in started else None)
        started.add(d)
    for c, d in ((0, E0), (2, E2)):
        for ks in range(2):
            mm(d, Gc(c, ks), Yr(c, ks))
            mm(d, Gs(c, ks), Yi(c, ks))
    for ks in range(2):
        mm(RR, Gc(1, ks), Yr(1, ks))
        mm(IPp, Gc(1, ks), Yi(1, ks))
        mm(RR, Gs(1, ks), Yi(1, ks))
        mm(IMm, Gs(1, ks), Yr(1, ks))
    for ks in range(2):
        mm(RR, Gc(3, ks), Yr(3, ks))
        mm(IPp, Gs(3, ks), Yr(3, ks))
        mm(RR, Gs(3, ks), Yi(3, ks))
        mm(IMm, Gc(3, ks), Yi(3, ks))
    ya, yb, yI = vRaw, vRaw + 4, vRaw + 8
    vYq = vRaw + 12
    for r in range(4):
        a.I("v_add_f32 %s, %s, %s" % (vr(ya + r), vr(E0 + r), vr(E2 + r)))
        a.I("v_sub_f32 %s, %s, %s" % (vr(yb + r), vr(E0 + r), vr(E2 + r)))
        a.I("v_sub_f32 %s, %s, %s" % (vr(yI + r), vr(IPp + r), vr(IMm + r)))
    for r in range(4):
        a.I("v_add_f32 %s, %s, %s" % (vr(vYq + 0 + r), vr(ya + r), vr(RR + r)))
        a.I("v_sub_f32 %s, %s, %s" % (vr(vYq + 4 + r), vr(yb + r), vr(yI + r)))
        a.I("v_sub_f32 %s, %s, %s" % (vr(vYq + 8 + r), vr(ya + r), vr(RR + r)))
        a.I("v_add_f32 %s, %s, %s" % (vr(vYq + 12 + r), vr(yb + r), vr(yI + r)))
    a.I("s_mov_b32 s%d, %s" % (S_T0, fhex(2.0 / (2048 * 512))))
    vXf = vAcc
    for q in range(4):
        for i in range(2):
            a.I("v_lshlrev_b32 %s, 16, %s" % (vr(vXf + 4 * q + 2 * i), vr(vX + 2 * q + i)))
            a.I("v_and_b32 %s, 0xffff0000, %s" % (vr(vXf + 4 * q + 2 * i + 1), vr(vX + 2 * q + i)))
    for q in range(4):
        for r in range(4):
            a.I("v_fma_f32 %s, %s, s%d, %s" % (vr(vXf + 4 * q + r), vr(vYq + 4 * q + r), S_T0, vr(vXf + 4 * q + r)))
    vHp = vAcc + 16
    for q in range(4):
        for i in range(2):
            a.I("v_cvt_pk_bf16_f32 %s, %s, %s" % (vr(vHp + 2 * q + i), vr(vXf + 4 * q + 2 * i), vr(vXf + 4 * q + 2 * i + 1)))
    a.I("s_lshr_b32 s%d, s%d, 1" % (S_T0 + 2, S_WAVE))
    a.I("s_and_b32 s%d, s%d, 1" % (S_T0 + 3, S_WAVE))
    a.I("s_lshl_b32 s%d, s%d, 15" % (S_T0, S_S2))
    a.I("s_lshl_b32 s%d, s%d, 13" % (S_T0 + 1, S_Q))
    a.I("s_add_u32 s%d, s%d, s%d" % (S_T0, S_T0, S_T0 + 1))
    a.I("s_lshl_b32 s%d, s%d, 12" % (S_T0 + 1, S_T0 + 3))
    a.I("s_add_u32 s%d, s%d, s%d" % (S_T0, S_T0, S_T0 + 1))
    a.I("s_lshl_b32 s%d, s%d, 8" % (S_T0 + 1, S_T0 + 2))
    a.I("s_add_u32 s%d, s%d, s%d" % (S_T0, S_T0, S_T0 + 1))
    a.I("v_lshrrev_b32 %s, 1, v%d" % (vr(vAd + 5), V_G))
    a.I("v_lshlrev_b32 %s, 10, %s" % (vr(vAd + 5), vr(vAd + 5)))
    a.I("v_and_b32 %s, 1, v%d" % (vr(vT), V_G))
    a.I("v_lshl_add_u32 %s, %s, 9, %s" % (vr(vAd + 5), vr(vT), vr(vAd + 5)))
    a.I("v_lshl_add_u32 %s, v%d, 4, %s" % (vr(vAd + 5), V_L15, vr(vAd + 5)))
    a.I("v_add_u32 %s, s%d, %s" % (vr(vAd + 5), S_T0, vr(vAd + 5)))
    for qp in range(2):
        a.I("global_store_dwordx4 %s, %s, s[%d:%d] offset:%d %s" % (vr(vAd + 5), vr(vHp + 4 * qp, 4), S_H, S_H + 1, qp * 2048, sc))
    vS0, vS1 = vT + 2, vT + 3
    a.I("v_mov_b32 %s, 0" % vr(vS0))
    a.I("v_mov_b32 %s, 0" % vr(vS1))
    for i in range(8):
        a.I("v_dot2c_f32_bf16 %s, s%d, %s" % (vr(vS0), S_ONES, vr(vHp + i)))
        a.I("v_dot2c_f32_bf16 %s, %s, %s" % (vr(vS1), vr(vHp + i), vr(vHp + i)))
    a.I("v_permlane32_swap_b32 %s, %s" % (vr(vS0), vr(vS1)))
    a.I("v_add_f32 %s, %s, %s" % (vr(vS0), vr(vS0), vr(vS1)))
    a.I("v_mov_b32 %s, %s" % (vr(vS1), vr(vS0)))
    a.I("v_permlane16_swap_b32 %s, %s" % (vr(vS0), vr(vS1)))
    a.I("v_add_f32 %s, %s, %s" % (vr(vS0), vr(vS0), vr(vS1)))
    a.I("s_lshl_b32 s%d, s%d, 11" % (S_T0, S_S2))
    a.I("s_lshl_b32 s%d, s%d, 9" % (S_T0 + 1, S_Q))
    a.I("s_add_u32 s%d, s%d, s%d" % (S_T0, S_T0, S_T0 + 1))
    a.I("s_lshl_b32 s%d, s%d, 8" % (S_T0 + 1, S_T0 + 3))
    a.I("s_add_u32 s%d, s%d, s%d" % (S_T0, S_T0, S_T0 + 1))
    a.I("s_lshl_b32 s%d, s%d, 7" % (S_T0 + 1, S_T0 + 2))
    a.I("s_add_u32 s%d, s%d, s%d" % (S_T0, S_T0, S_T0 + 1))
    a.I("v_lshrrev_b32 %s, 5, v%d" % (vr(vT), V_LANE))
    a.I("v_lshlrev_b32 %s, 6, %s" % (vr(vT), vr(vT)))
    a.I("v_lshl_add_u32 %s, v%d, 2, %s" % (vr(vT), V_L15, vr(vT)))
    a.I("v_add_u32 %s, s%d, %s" % (vr(vT), S_T0, vr(vT)))
    a.I("global_store_dword %s, %s, s[%d:%d] %s" % (vr(vT), vr(vS0), S_ST, S_ST + 1, sc))


def w1_dma(a, vOff):
    t0, t1 = vOff + 7, vOff + 8
    a.c("w1 DMA: per-lane source offsets")
    for i in range(7):
        o = vOff + i
        a.I("v_add_u32 %s, %d, v%d" % (vr(t0), 64 * i, V_LANE))
        a.I("v_mul_u32_u24 %s, 1171, %s" % (vr(t1), vr(t0)))
        a.I("v_lshrrev_b32 %s, 16, %s" % (vr(t1), vr(t1)))
        a.I("v_mul_u32_u24 %s, 56, %s" % (vr(o), vr(t1)))
        a.I("v_sub_u32 %s, %s, %s" % (vr(t0), vr(t0), vr(o)))
        a.I("v_lshlrev_b32 %s, 2, %s" % (vr(t1), vr(t1)))
        a.I("v_bfe_u32 %s, %s, 2, 2" % (vr(o), vr(t0)))
        a.I("v_subrev_u32 %s, 48, %s" % (vr(o + 9), vr(t0)))
        a.I("v_lshrrev_b32 %s, 1, %s" % (vr(o + 9), vr(o + 9)))
        a.I("v_cmp_gt_u32 vcc, 48, %s" % vr(t0))
        a.I("v_cndmask_b32 %s, %s, %s, vcc" % (vr(o), vr(o + 9), vr(o)))
        a.I("v_add_u32 %s, %s, %s" % (vr(t1), vr(t1), vr(o)))
        a.I("v_lshrrev_b32 %s, 4, %s" % (vr(o), vr(t0)))
        a.I("v_lshlrev_b32 %s, 2, %s" % (vr(o), vr(o)))
        a.I("v_and_b32 %s, 3, %s" % (vr(o + 9), vr(t0)))
        a.I("v_add_u32 %s, %s, %s" % (vr(o), vr(o), vr(o + 9)))
        a.I("v_and_b32 %s, 1, %s" % (vr(o + 9), vr(t0)))
        a.I("v_add_u32 %s, 12, %s" % (vr(o + 9), vr(o + 9)))
        a.I("v_cndmask_b32 %s, %s, %s, vcc" % (vr(o), vr(o + 9), vr(o)))
        a.I("v_lshlrev_b32 %s, 4, %s" % (vr(o), vr(o)))
        a.I("v_mul_u32_u24 %s, 3584, %s" % (vr(t1), vr(t1)))
        a.I("v_add_u32 %s, %s, %s" % (vr(o), vr(o), vr(t1)))
    a.I("s_mul_i32 s%d, s%d, 224" % (S_T0, S_MI))
    a.I("s_mul_i32 s%d, s%d, %d" % (S_T0 + 1, S_WAVE, 4 * 32 * 3584))
    a.I("s_add_u32 s%d, s%d, s%d" % (S_T0, S_T0, S_T0 + 1))
    a.I("s_add_u32 s%d, s%d, s%d" % (S_T0 + 2, S_W1, S_T0))
    a.I("s_addc_u32 s%d, s%d, 0" % (S_T0 + 3, S_W1 + 1))
    a.I("s_mul_i32 s%d, s%d, %d" % (S_T0 + 4, S_WAVE, 4 * 7168))
    for per in range(4):
        for i in range(7):
            a.I("s_add_u32 m0, s%d, %d" % (S_T0 + 4, L_W1 + per * 7168 + i * 1024))
            a.I("global_load_lds_dwordx4 %s, s[%d:%d]" % (vr(vOff + i), S_T0 + 2, S_T0 + 3))
        if per < 3:
            a.I("s_add_u32 s%d, s%d, %d" % (S_T0 + 2, S_T0 + 2, 32 * 3584))
            a.I("s_addc_u32 s%d, s%d, 0" % (S_T0 + 3, S_T0 + 3))


def w1_frag_offsets(t, kstep):
    gg = kstep & 1
    qp = (kstep >> 1) & 1
    mt2 = (kstep >> 2) & 1
    qn = kstep >> 3
    k0 = 256 * qp + 32 * qn + 16 * mt2
    blk = k0 // 4 + 2 * gg
    off1 = blk * 896
    off2 = (blk + 32) * 896
    tile = t * 256 if t < 3 else 768
    return off1 + tile, off2 + tile


def w1_lane_base(a, dst, dst3, t0):
    a.I("v_lshrrev_b32 %s, 5, v%d" % (vr(t0), V_LANE))
    a.I("v_mul_u32_u24 %s, 896, %s" % (vr(dst), vr(t0)))
    a.I("v_bfe_u32 %s, v%d, 2, 2" % (vr(t0), V_LANE))
    a.I("v_lshl_add_u32 %s, %s, 5, %s" % (vr(dst3), vr(t0), vr(dst)))
    a.I("v_lshl_add_u32 %s, %s, 6, %s" % (vr(dst), vr(t0), vr(dst)))
    a.I("v_and_b32 %s, 3, v%d" % (vr(t0), V_LANE))
    a.I("v_lshl_add_u32 %s, %s, 3, %s" % (vr(dst), vr(t0), vr(dst)))
    a.I("v_lshl_add_u32 %s, %s, 3, %s" % (vr(dst3), vr(t0), vr(dst3)))
    a.I("v_bfe_u32 %s, v%d, 4, 1" % (vr(t0), V_LANE))
    a.I("v_lshl_add_u32 %s, %s, 5, %s" % (vr(dst), vr(t0), vr(dst)))
    if L_W1:
        a.I("v_add_u32 %s, %d, %s" % (vr(dst), L_W1, vr(dst)))
        a.I("v_add_u32 %s, %d, %s" % (vr(dst3), L_W1, vr(dst3)))


def w1_read(a, dst, bases, t, kstep):
    o1, o2 = w1_frag_offsets(t, kstep)
    for j, o in enumerate((o1, o2)):
        sel = 0
        if o >= 57344:
            o -= 57344
            sel = 1
        b = bases[sel + (2 if t == 3 else 0)]
        a.I("ds_read_b64_tr_b16 %s, %s offset:%d" % (vr(dst + 2 * j, 2), vr(b), o))


def colsum_bias(a, vW, bases):
    acc = vW
    ones = vW + 16
    fr = vW + 20
    for i in range(4):
        a.I("v_mov_b32 %s, s%d" % (vr(ones + i), S_ONES))
    st = a.save()
    for w in range(1, 4):
        a.I("s_cmp_eq_u32 s%d, %d" % (S_WAVE, w))
        a.I("s_cbranch_scc1 CS_W%d" % w)
    for w in range(4):
        a.restore(st)
        a.label("CS_W%d" % w)
        for ks in range(3):
            w1_read(a, fr + 4 * (ks % 4), bases, w, ks)
        for ks in range(32):
            if ks + 3 < 32:
                w1_read(a, fr + 4 * ((ks + 3) % 4), bases, w, ks + 3)
            a.I("v_mfma_f32_32x32x16_bf16 %s, %s, %s, %s" % (vr(acc, 16), vr(fr + 4 * (ks % 4), 4), vr(ones, 4), "0" if ks == 0 else vr(acc, 16)))
        a.I("s_waitcnt lgkmcnt(0)")
        if w < 3:
            a.flush_hazards()
            a.I("s_branch CS_JOIN")
    a.label("CS_JOIN")
    t0 = vW + 36
    a.I("v_lshrrev_b32 %s, 5, v%d" % (vr(t0), V_LANE))
    a.I("v_lshlrev_b32 %s, 4, %s" % (vr(t0), vr(t0)))
    a.I("s_lshl_b32 s%d, s%d, 7" % (S_T0, S_WAVE))
    a.I("s_add_u32 s%d, s%d, %d" % (S_T0, S_T0, L_CB))
    a.I("v_add_u32 %s, s%d, %s" % (vr(t0), S_T0, vr(t0)))
    a.I("s_mov_b32 s%d, 1" % (S_T0 + 2))
    a.I("s_mov_b32 s%d, 1" % (S_T0 + 3))
    a.I("s_mov_b64 exec, s[%d:%d]" % (S_T0 + 2, S_T0 + 3))
    for g in range(4):
        a.I("ds_write_b128 %s, %s offset:%d" % (vr(t0), vr(acc + 4 * g, 4), 32 * g))
    a.I("s_mov_b64 exec, -1")
    a.I("s_mul_i32 s%d, s%d, 224" % (S_T0, S_MI))
    a.I("v_min_u32 %s, 111, v0" % vr(t0))
    a.I("v_lshlrev_b32 %s, 1, %s" % (vr(t0), vr(t0)))
    a.I("v_add_u32 %s, s%d, %s" % (vr(t0), S_T0, vr(t0)))
    a.I("global_load_ushort %s, %s, s[%d:%d]" % (vr(t0 + 1), vr(t0), S_B1, S_B1 + 1))
    a.I("v_lshlrev_b32 %s, 16, %s" % (vr(t0 + 1), vr(t0 + 1)))
    a.I("v_mul_f32 %s, %s, %s" % (vr(t0 + 1), fhex(LOG2E), vr(t0 + 1)))
    a.I("v_lshlrev_b32 %s, 2, v0" % vr(t0))
    a.I("v_add_u32 %s, %d, %s" % (vr(t0), L_CB + 512, vr(t0)))
    a.I("v_cmp_gt_u32 vcc, 128, v0")
    a.I("s_and_saveexec_b64 s[%d:%d], vcc" % (S_T0 + 2, S_T0 + 3))
    a.I("ds_write_b32 %s, %s" % (vr(t0), vr(t0 + 1)))
    a.I("s_mov_b64 exec, s[%d:%d]" % (S_T0 + 2, S_T0 + 3))


def p4_main(a, R, bases, sc=""):
    vT = R.alloc(8)
    vB = R.alloc(128, 4)
    vAcc = R.alloc(64, 4)
    vA = R.alloc(32, 4)
    vAd = R.alloc(4)
    vSt = R.alloc(8, 4)
    vRs, vMr = R.alloc(1), R.alloc(1)
    vLn2 = R.alloc(1)
    a.I("s_lshl_b32 s%d, s%d, 5" % (S_T0, S_Y))
    a.I("s_add_u32 s%d, s%d, s%d" % (S_T0, S_T0, S_X3))
    a.I("s_lshl_b32 s%d, s%d, 3" % (S_T0 + 1, S_WAVE))
    a.I("s_add_u32 s%d, s%d, s%d" % (S_T0 + 8, S_T0, S_T0 + 1))
    S2W = S_T0 + 8
    a.I("s_lshl_b32 s%d, s%d, 11" % (S_T0, S2W))
    a.I("v_bfe_u32 %s, v%d, 4, 1" % (vr(vT), V_LANE))
    a.I("v_lshlrev_b32 %s, 7, %s" % (vr(vT), vr(vT)))
    a.I("v_lshrrev_b32 %s, 5, v%d" % (vr(vT + 1), V_LANE))
    a.I("v_lshl_add_u32 %s, %s, 6, %s" % (vr(vT), vr(vT + 1), vr(vT)))
    a.I("v_lshl_add_u32 %s, v%d, 2, %s" % (vr(vT), V_L15, vr(vT)))
    a.I("v_add_u32 %s, s%d, %s" % (vr(vT), S_T0, vr(vT)))
    for p in range(8):
        a.I("global_load_dword %s, %s, s[%d:%d] offset:%d %s" % (vr(vSt + p), vr(vT), S_ST, S_ST + 1, p * 256, sc))
    a.I("s_lshl_b32 s%d, s%d, 15" % (S_T0, S2W))
    a.I("v_lshl_add_u32 %s, v%d, 4, s%d" % (vr(vAd), V_LANE, S_T0))
    for ks in range(32):
        if ks and ks % 4 == 0:
            a.I("v_add_u32 %s, 4096, %s" % (vr(vAd), vr(vAd)))
        a.I("global_load_dwordx4 %s, %s, s[%d:%d] offset:%d %s" % (vr(vB + 4 * ks, 4), vr(vAd), S_H, S_H + 1, (ks % 4) * 1024, sc))
    for p in range(1, 8):
        a.I("v_add_f32 %s, %s, %s" % (vr(vSt), vr(vSt), vr(vSt + p)))
    a.I("v_mov_b32 %s, %s" % (vr(vSt + 1), vr(vSt)))
    a.I("v_permlane32_swap_b32 %s, %s" % (vr(vSt), vr(vSt + 1)))
    ln_finish(a, vSt, vSt + 1, vSt + 2, vSt + 3, vSt + 4, vSt + 5)
    a.I("v_mul_f32 %s, %s, %s" % (vr(vRs), fhex(LOG2E), vr(vSt + 3)))
    a.I("v_mul_f32 %s, %s, %s" % (vr(vMr), vr(vSt + 2), vr(vRs)))
    a.I("v_sub_f32 %s, 0, %s" % (vr(vMr), vr(vMr)))
    a.I("v_mov_b32 %s, %s" % (vr(vLn2), fhex(LN2)))
    a.I("s_mov_b32 s%d, %s" % (S_T0 + 9, fhex(LOG2E)))
    a.I("s_mov_b32 s%d, %s" % (S_T0 + 10, fhex(60.0)))
    a.I("s_mul_i32 s%d, s%d, %d" % (S_T0, S2W, 112 * 1024))
    a.I("s_mul_i32 s%d, s%d, %d" % (S_T0 + 1, S_MI, 7 * 1024))
    a.I("s_add_u32 s%d, s%d, s%d" % (S_T0, S_T0, S_T0 + 1))
    a.I("v_lshl_add_u32 %s, v%d, 4, s%d" % (vr(vAd + 1), V_LANE, S_T0))
    a.I("v_add_u32 %s, 4096, %s" % (vr(vAd + 2), vr(vAd + 1)))
    a.I("v_lshrrev_b32 %s, 5, v%d" % (vr(vAd + 3), V_LANE))
    a.I("v_lshlrev_b32 %s, 4, %s" % (vr(vAd + 3), vr(vAd + 3)))
    a.I("v_add_u32 %s, %d, %s" % (vr(vAd + 3), L_CB, vr(vAd + 3)))
    NB = 8
    for t in range(4):
        acc = vAcc + 16 * t
        for ks in range(NB - 1):
            w1_read(a, vA + 4 * (ks % NB), bases, t, ks)
        for ks in range(32):
            if ks + NB - 1 < 32:
                w1_read(a, vA + 4 * ((ks + NB - 1) % NB), bases, t, ks + NB - 1)
            a.I("v_mfma_f32_32x32x16_bf16 %s, %s, %s, %s" % (vr(acc, 16), vr(vA + 4 * (ks % NB), 4), vr(vB + 4 * ks, 4), "0" if ks == 0 else vr(acc, 16)))
    e = vA
    for t in range(4):
        acc = vAcc + 16 * t
        for half in range(2 if t < 3 else 1):
            pk = e + 24
            for g2 in range(2):
                g = 2 * half + g2
                cs, bb = e, e + 4
                a.I("ds_read_b128 %s, %s offset:%d" % (vr(cs, 4), vr(vAd + 3), (32 * t + 8 * g) * 4))
                a.I("ds_read_b128 %s, %s offset:%d" % (vr(bb, 4), vr(vAd + 3), 512 + (32 * t + 8 * g) * 4))
                u, tt, aa, nn = e + 8, e + 12, e + 16, e + 20
                for r in range(4):
                    a.I("v_fma_f32 %s, %s, %s, %s" % (vr(bb + r), vr(cs + r), vr(vMr), vr(bb + r)))
                for r in range(4):
                    a.I("v_fma_f32 %s, %s, %s, %s" % (vr(u + r), vr(acc + 4 * g + r), vr(vRs), vr(bb + r)))
                for r in range(4):
                    a.I("v_min_f32 %s, s%d, %s" % (vr(tt + r), S_T0 + 10, vr(u + r)))
                for r in range(4):
                    a.I("v_exp_f32 %s, %s" % (vr(tt + r), vr(tt + r)))
                for r in range(4):
                    a.I("v_fmaak_f32 %s, %s, %s, %s" % (vr(aa + r), vr(tt + r), vr(vLn2), fhex(2 * LN2)))
                for r in range(4):
                    a.I("v_mul_f32 %s, %s, %s" % (vr(nn + r), vr(tt + r), vr(aa + r)))
                for r in range(4):
                    a.I("v_fma_f32 %s, %s, s%d, 2.0" % (vr(aa + r), vr(nn + r), S_T0 + 9))
                for r in range(4):
                    a.I("v_rcp_f32 %s, %s" % (vr(aa + r), vr(aa + r)))
                for r in range(4):
                    a.I("v_mul_f32 %s, %s, %s" % (vr(nn + r), vr(nn + r), vr(aa + r)))
                for r in range(4):
                    a.I("v_mul_f32 %s, %s, %s" % (vr(nn + r), vr(nn + r), vr(u + r)))
                a.I("v_cvt_pk_bf16_f32 %s, %s, %s" % (vr(pk + 2 * g2), vr(nn), vr(nn + 1)))
                a.I("v_cvt_pk_bf16_f32 %s, %s, %s" % (vr(pk + 2 * g2 + 1), vr(nn + 2), vr(nn + 3)))
            ftl = 2 * t + half
            a.I("global_store_dwordx4 %s, %s, s[%d:%d] offset:%d %s" % (
                vr(vAd + 1 + (ftl >> 2)), vr(pk, 4), S_ACT, S_ACT + 1, (ftl & 3) * 1024, sc))


def p4(a, sc=""):
    R = Regs(4)
    vOff = R.alloc(20)
    w1_dma(a, vOff)
    R = Regs(4)
    bases = [R.alloc(1) for _ in range(4)]
    w1_lane_base(a, bases[0], bases[2], R.p)
    a.I("v_add_u32 %s, 57344, %s" % (vr(bases[1]), vr(bases[0])))
    a.I("v_add_u32 %s, 57344, %s" % (vr(bases[3]), vr(bases[2])))
    a.I("s_waitcnt vmcnt(0)")
    a.I("s_barrier")
    colsum_bias(a, 200, bases)
    a.I("s_waitcnt lgkmcnt(0)")
    a.I("s_barrier")
    p4_main(a, R, bases, sc)


def w2_stage(a, vOff, vTr, lds_base_wave_stride, lds_base, rounds):
    t0 = vOff + 1
    a.I("v_lshrrev_b32 %s, 5, v%d" % (vr(vOff), V_LANE))
    a.I("v_lshlrev_b32 %s, 2, %s" % (vr(vOff), vr(vOff)))
    a.I("v_bfe_u32 %s, v%d, 2, 2" % (vr(t0), V_LANE))
    a.I("v_add_u32 %s, %s, %s" % (vr(vOff), vr(vOff), vr(t0)))
    a.I("v_lshlrev_b32 %s, 10, %s" % (vr(vOff), vr(vOff)))
    a.I("v_bfe_u32 %s, v%d, 4, 1" % (vr(t0), V_LANE))
    a.I("v_lshl_add_u32 %s, %s, 6, %s" % (vr(vOff), vr(t0), vr(vOff)))
    a.I("v_and_b32 %s, 3, v%d" % (vr(t0), V_LANE))
    a.I("v_lshl_add_u32 %s, %s, 4, %s" % (vr(vOff), vr(t0), vr(vOff)))
    a.I("s_and_b32 s%d, s%d, 7" % (S_T0, S_MI))
    a.I("s_lshl_b32 s%d, s%d, 7" % (S_T0, S_T0))
    a.I("s_mul_i32 s%d, s%d, %d" % (S_T0 + 1, S_WAVE, 448 * 1024))
    a.I("s_add_u32 s%d, s%d, s%d" % (S_T0, S_T0, S_T0 + 1))
    a.I("s_add_u32 s%d, s%d, s%d" % (S_T0 + 2, S_W2, S_T0))
    a.I("s_addc_u32 s%d, s%d, 0" % (S_T0 + 3, S_W2 + 1))
    a.I("s_mul_i32 s%d, s%d, %d" % (S_T0 + 4, S_WAVE, lds_base_wave_stride))
    a.I("s_add_u32 s%d, s%d, %d" % (S_T0 + 4, S_T0 + 4, lds_base))
    a.I("v_lshrrev_b32 %s, 5, v%d" % (vr(vTr), V_LANE))
    a.I("v_lshlrev_b32 %s, 9, %s" % (vr(vTr), vr(vTr)))
    a.I("v_bfe_u32 %s, v%d, 2, 2" % (vr(t0), V_LANE))
    a.I("v_lshl_add_u32 %s, %s, 6, %s" % (vr(vTr), vr(t0), vr(vTr)))
    a.I("v_bfe_u32 %s, v%d, 4, 1" % (vr(t0), V_LANE))
    a.I("v_lshl_add_u32 %s, %s, 5, %s" % (vr(vTr), vr(t0), vr(vTr)))
    a.I("v_and_b32 %s, 3, v%d" % (vr(t0), V_LANE))
    a.I("v_lshl_add_u32 %s, %s, 3, %s" % (vr(vTr), vr(t0), vr(vTr)))
    a.I("v_add_u32 %s, s%d, %s" % (vr(vTr), S_T0 + 4, vr(vTr)))
    for (k0, nk) in rounds:
        for i in range(2 * nk):
            a.I("s_add_u32 m0, s%d, %d" % (S_T0 + 4, i * 1024))
            a.I("global_load_lds_dwordx4 %s, s[%d:%d]" % (vr(vOff), S_T0 + 2, S_T0 + 3))
            a.I("v_add_u32 %s, 8192, %s" % (vr(vOff), vr(vOff)))
        a.I("s_waitcnt vmcnt(0)")
        for kk in range(nk):
            for mt in range(2):
                for j in range(2):
                    a.I("ds_read_b64_tr_b16 %s, %s offset:%d" % (ar((mt * 28 + k0 + kk) * 4 + 2 * j, 2), vr(vTr), kk * 2048 + j * 1024 + mt * 256))
        a.I("s_waitcnt lgkmcnt(0)")


def p5_main(a, R, red_base, sc=""):
    vT = R.alloc(8)
    vAcc = R.alloc(64, 4)
    NB = 36
    vB = R.alloc(4 * NB, 4)
    vAd = R.alloc(4)
    vH = R.alloc(8, 4)
    a.I("s_lshl_b32 s%d, s%d, 5" % (S_T0, S_Y))
    a.I("s_add_u32 s%d, s%d, s%d" % (S_T0, S_T0, S_X3))
    a.I("s_lshr_b32 s%d, s%d, 3" % (S_T0 + 1, S_MI))
    a.I("s_lshl_b32 s%d, s%d, 4" % (S_T0 + 1, S_T0 + 1))
    a.I("s_add_u32 s%d, s%d, s%d" % (S_T0 + 8, S_T0, S_T0 + 1))
    S2A = S_T0 + 8
    a.I("s_mul_i32 s%d, s%d, %d" % (S_T0, S2A, 112 * 1024))
    a.I("s_mul_i32 s%d, s%d, %d" % (S_T0 + 1, S_WAVE, 28 * 1024))
    a.I("s_add_u32 s%d, s%d, s%d" % (S_T0, S_T0, S_T0 + 1))
    a.I("v_lshl_add_u32 %s, v%d, 4, s%d" % (vr(vAd), V_LANE, S_T0))
    a.I("v_add_u32 %s, %d, %s" % (vr(vAd + 1), 8 * 112 * 1024, vr(vAd)))
    seq = [(kk, rb) for kk in range(28) for rb in range(2)]

    def ld(i):
        kk, rb = seq[i]
        if kk and kk % 4 == 0:
            a.I("v_add_u32 %s, 4096, %s" % (vr(vAd + rb), vr(vAd + rb)))
        a.I("global_load_dwordx4 %s, %s, s[%d:%d] offset:%d %s" % (vr(vB + 4 * (i % NB), 4), vr(vAd + rb), S_ACT, S_ACT + 1, (kk % 4) * 1024, sc))
    for i in range(NB):
        ld(i)
    a.I("s_and_b32 s%d, s%d, 1" % (S_T0 + 9, S_WAVE))
    a.I("s_lshr_b32 s%d, s%d, 1" % (S_T0 + 10, S_WAVE))
    a.I("s_lshl_b32 s%d, s%d, 3" % (S_T0, S_T0 + 10))
    a.I("s_add_u32 s%d, s%d, s%d" % (S_T0 + 11, S2A, S_T0))
    for i, (kk, rb) in enumerate(seq):
        for mt in range(2):
            acc = vAcc + 32 * mt + 16 * rb
            a.I("v_mfma_f32_32x32x16_bf16 %s, %s, %s, %s" % (vr(acc, 16), ar((mt * 28 + kk) * 4, 4), vr(vB + 4 * (i % NB), 4), "0" if kk == 0 else vr(acc, 16)))
        if i + NB < len(seq):
            ld(i + NB)
    a.I("s_and_b32 s%d, s%d, 7" % (S_T0 + 12, S_MI))
    a.I("s_and_b32 s%d, s%d, 1" % (S_T0, S_T0 + 12))
    a.I("s_lshl_b32 s%d, s%d, 1" % (S_T0, S_T0))
    a.I("s_add_u32 s%d, s%d, s%d" % (S_T0, S_T0, S_T0 + 9))
    a.I("s_lshl_b32 s%d, s%d, 13" % (S_T0, S_T0))
    a.I("s_lshr_b32 s%d, s%d, 2" % (S_T0 + 1, S_T0 + 12))
    a.I("s_lshl_b32 s%d, s%d, 11" % (S_T0 + 1, S_T0 + 1))
    a.I("s_add_u32 s%d, s%d, s%d" % (S_T0, S_T0, S_T0 + 1))
    a.I("s_bfe_u32 s%d, s%d, 0x10001" % (S_T0 + 1, S_T0 + 12))
    a.I("s_lshl_b32 s%d, s%d, 3" % (S_T0 + 1, S_T0 + 1))
    a.I("s_add_u32 s%d, s%d, s%d" % (S_T0, S_T0, S_T0 + 1))
    a.I("s_lshl_b32 s%d, s%d, 15" % (S_T0 + 1, S_T0 + 11))
    a.I("s_add_u32 s%d, s%d, s%d" % (S_T0, S_T0, S_T0 + 1))
    a.I("s_add_u32 s%d, s%d, 2048" % (S_T0, S_T0))
    a.I("v_lshl_add_u32 %s, v%d, 4, s%d" % (vr(vAd + 2), V_LANE, S_T0))
    for g, off in enumerate((-2048, -1024, 2048, 3072)):
        a.I("global_load_dwordx2 %s, %s, s[%d:%d] offset:%d %s" % (vr(vH + 2 * g, 2), vr(vAd + 2), S_H, S_H + 1, off, sc))
    a.I("v_lshlrev_b32 %s, 4, v%d" % (vr(vT), V_LANE))
    if red_base:
        a.I("v_add_u32 %s, %d, %s" % (vr(vT), red_base, vr(vT)))
    st = a.save()
    for w in range(1, 4):
        a.I("s_cmp_eq_u32 s%d, %d" % (S_WAVE, w))
        a.I("s_cbranch_scc1 P5_W%d" % w)
    own = vB
    for w in range(4):
        a.restore(st)
        a.label("P5_W%d" % w)
        for o in range(4):
            if o == w:
                continue
            slot = (w - o - 1) % 4
            tile = vAcc + 32 * (o & 1) + 16 * (o >> 1)
            for g in range(4):
                a.I("ds_write_b128 %s, %s offset:%d" % (vr(vT), vr(tile + 4 * g, 4), (o * 3 + slot) * 4096 + g * 1024))
        tile = vAcc + 32 * (w & 1) + 16 * (w >> 1)
        for r in range(16):
            a.I("v_mov_b32 %s, %s" % (vr(own + r), vr(tile + r)))
        if w < 3:
            a.flush_hazards()
            a.I("s_branch P5_JOIN")
    a.label("P5_JOIN")
    a.I("s_waitcnt lgkmcnt(0)")
    a.I("s_barrier")
    a.I("s_mul_i32 s%d, s%d, %d" % (S_T0, S_WAVE, 3 * 4096))
    a.I("v_add_u32 %s, s%d, %s" % (vr(vT), S_T0, vr(vT)))
    rd = vB + 16
    for slot in range(3):
        for g in range(4):
            a.I("ds_read_b128 %s, %s offset:%d" % (vr(rd + 16 * slot + 4 * g, 4), vr(vT), slot * 4096 + g * 1024))
    for slot in range(3):
        for r in range(16):
            a.I("v_add_f32 %s, %s, %s" % (vr(own + r), vr(own + r), vr(rd + 16 * slot + r)))
    pk = vB + 64
    for g in range(4):
        for i in range(2):
            x0, x1 = own + 4 * g + 2 * i, own + 4 * g + 2 * i + 1
            a.I("v_cvt_pk_bf16_f32 %s, %s, %s" % (vr(vT + 1), vr(x0), vr(x1)))
            a.I("v_lshlrev_b32 %s, 16, %s" % (vr(x0), vr(vT + 1)))
            a.I("v_and_b32 %s, 0xffff0000, %s" % (vr(x1), vr(vT + 1)))
            a.I("v_lshlrev_b32 %s, 16, %s" % (vr(vT + 2), vr(vH + 2 * g + i)))
            a.I("v_and_b32 %s, 0xffff0000, %s" % (vr(vT + 3), vr(vH + 2 * g + i)))
            a.I("v_add_f32 %s, %s, %s" % (vr(x0), vr(x0), vr(vT + 2)))
            a.I("v_add_f32 %s, %s, %s" % (vr(x1), vr(x1), vr(vT + 3)))
            a.I("v_cvt_pk_bf16_f32 %s, %s, %s" % (vr(pk + 2 * g + i), vr(x0), vr(x1)))
    for ap in range(2):
        a.I("v_permlane32_swap_b32 %s, %s" % (vr(pk + 4 * ap), vr(pk + 4 * ap + 2)))
        a.I("v_permlane32_swap_b32 %s, %s" % (vr(pk + 4 * ap + 1), vr(pk + 4 * ap + 3)))
    a.I("s_lshl_b32 s%d, s%d, 10" % (S_T0, S_T0 + 11))
    a.I("s_lshl_b32 s%d, s%d, 7" % (S_T0 + 1, S_T0 + 12))
    a.I("s_add_u32 s%d, s%d, s%d" % (S_T0, S_T0, S_T0 + 1))
    a.I("s_lshl_b32 s%d, s%d, 6" % (S_T0 + 1, S_T0 + 9))
    a.I("s_add_u32 s%d, s%d, s%d" % (S_T0, S_T0, S_T0 + 1))
    a.I("v_and_b32 %s, 31, v%d" % (vr(vT), V_LANE))
    a.I("v_lshlrev_b32 %s, 16, %s" % (vr(vT), vr(vT)))
    a.I("v_lshrrev_b32 %s, 5, v%d" % (vr(vT + 1), V_LANE))
    a.I("v_lshl_add_u32 %s, %s, 4, %s" % (vr(vT), vr(vT + 1), vr(vT)))
    a.I("v_add_u32 %s, s%d, %s" % (vr(vT), S_T0, vr(vT)))
    for ap in range(2):
        a.I("global_store_dwordx4 %s, %s, s[%d:%d] offset:%d" % (vr(vT), vr(pk + 4 * ap, 4), S_OUT, S_OUT + 1, ap * 32))


def p5(a, sc=""):
    R = Regs(4)
    vOff = R.alloc(2)
    vTr = R.alloc(1)
    w2_stage(a, vOff, vTr, 40960, 0, [(0, 14), (14, 14)])
    a.I("s_barrier")
    R = Regs(4)
    p5_main(a, R, 0, sc)


PHASES = {"p2": p2, "p3": p3, "p4": p4, "p5": p5}
```

```python
import struct
import sys
from asmgen import Asm, vr, ar, sr

NAME = "sequential_preLN__spectral_gfnet__dense_activation_mish__prompt"

WS_T = 0x000000
WS_U = 0x200000
WS_H = 0x400000
WS_ST = 0x600000
WS_ACT = 0x800000
WS_CNT = 0x1000000

L_W1 = 0
L_WORK = 114688
L_X = L_WORK
XP = 1056
L_R = L_X + 32 * XP
L_Z = L_WORK
ZP = 288
L_Y = L_WORK
L_CB = 163840 - 1024
LDS_BYTES = 163840

S_X, S_WR, S_WI, S_W1, S_B1, S_W2, S_OUT, S_DBG, S_WS = 4, 6, 8, 12, 14, 16, 18, 20, 22
S_T, S_U, S_H, S_ST, S_ACT, S_CNT = 24, 26, 28, 30, 32, 34
S_WAVE, S_X3, S_Q, S_S2, S_MI, S_K1, S_BLK, S_Y = 40, 41, 42, 43, 44, 45, 46, 47
S_T0 = 48
S_ONES = 64
S_PLO, S_PHI = 65, 66
S_NEG = 67

V_TID, V_LANE, V_L15, V_G = 0, 1, 2, 3


def fhex(x):
    return "0x%08x" % struct.unpack("<I", struct.pack("<f", x))[0]


class Regs:
    def __init__(self, start, limit=256):
        self.p = start
        self.limit = limit

    def alloc(self, n=1, align=1):
        if n >= 2 and align == 1:
            align = 2
        self.p = (self.p + align - 1) // align * align
        r = self.p
        self.p += n
        assert self.p <= self.limit, "out of registers %d" % self.p
        return r


def fma_k(a, dst, src0, K, src1):
    if K == 0:
        a.I("v_mov_b32 %s, %s" % (vr(dst), vr(src1)))
    else:
        a.I("v_fmamk_f32 %s, %s, %s, %s" % (vr(dst), vr(src0), fhex(float(K)), vr(src1)))


def prologue(a, end_label):
    a.I("s_cmp_ge_u32 s2, 256")
    a.I("s_cbranch_scc1 %s" % end_label)
    a.I("s_load_dwordx4 s[4:7], s[0:1], 0")
    a.I("s_load_dwordx2 s[8:9], s[0:1], 16")
    a.I("s_load_dwordx4 s[12:15], s[0:1], 32")
    a.I("s_load_dwordx4 s[16:19], s[0:1], 48")
    a.I("s_load_dwordx4 s[20:23], s[0:1], 64")
    a.I("v_and_b32 v%d, 63, v0" % V_LANE)
    a.I("v_and_b32 v%d, 15, v0" % V_L15)
    a.I("v_bfe_u32 v%d, v0, 4, 2" % V_G)
    a.I("v_lshrrev_b32 v4, 6, v0")
    a.I("v_readfirstlane_b32 s%d, v4" % S_WAVE)
    a.I("s_and_b32 s%d, s2, 7" % S_X3)
    a.I("s_bfe_u32 s%d, s2, 0x20003" % S_Q)
    a.I("s_lshr_b32 s%d, s2, 5" % S_BLK)
    a.I("s_lshl_b32 s%d, s%d, 3" % (S_S2, S_BLK))
    a.I("s_add_u32 s%d, s%d, s%d" % (S_S2, S_S2, S_X3))
    a.I("s_bfe_u32 s%d, s2, 0x40003" % S_MI)
    a.I("s_and_b32 s%d, s2, 31" % S_K1)
    a.I("s_lshr_b32 s%d, s2, 7" % S_Y)
    a.I("s_mov_b32 s%d, 0x3f803f80" % S_ONES)
    a.I("s_mov_b32 s%d, 0x05040100" % S_PLO)
    a.I("s_mov_b32 s%d, 0x07060302" % S_PHI)
    a.I("s_mov_b32 s%d, 0x80008000" % S_NEG)
    a.I("s_waitcnt lgkmcnt(0)")
    for reg, off in ((S_T, WS_T), (S_U, WS_U), (S_H, WS_H), (S_ST, WS_ST), (S_ACT, WS_ACT), (S_CNT, WS_CNT)):
        a.I("s_add_u32 s%d, s%d, 0x%x" % (reg, S_WS, off))
        a.I("s_addc_u32 s%d, s%d, 0" % (reg + 1, S_WS + 1))


def sincos_pack(a, tmp, vJ, vBase, Ks, dstC, dstS, neg_sin, dstN=None, scale_first=None):
    n = len(Ks)
    for i in range(n // 2):
        a0, a1, c0, c1, s0, s1 = tmp, tmp + 1, tmp + 2, tmp + 3, tmp + 4, tmp + 5
        fma_k(a, a0, vJ, Ks[2 * i], vBase)
        fma_k(a, a1, vJ, Ks[2 * i + 1], vBase)
        a.I("v_cos_f32 %s, %s" % (vr(c0), vr(a0)))
        a.I("v_cos_f32 %s, %s" % (vr(c1), vr(a1)))
        sg = "-" if neg_sin else ""
        a.I("v_sin_f32_e64 %s, %s%s" % (vr(s0), sg, vr(a0)))
        a.I("v_sin_f32_e64 %s, %s%s" % (vr(s1), sg, vr(a1)))
        if scale_first is not None and i == 0:
            a.I("v_mul_f32 %s, %s, %s" % (vr(c0), vr(scale_first), vr(c0)))
            a.I("v_mul_f32 %s, %s, %s" % (vr(s0), vr(scale_first), vr(s0)))
        a.I("v_cvt_pk_bf16_f32 %s, %s, %s" % (vr(dstC + i), vr(c0), vr(c1)))
        a.I("v_cvt_pk_bf16_f32 %s, %s, %s" % (vr(dstS + i), vr(s0), vr(s1)))
        if dstN is not None:
            a.I("v_xor_b32 %s, s%d, %s" % (vr(dstN + i), S_NEG, vr(dstS + i)))


def mfma16(a, d, A, B, C=None, areg=False):
    c = "0" if C is None else vr(C, 4)
    a.I("v_mfma_f32_16x16x32_bf16 %s, %s, %s, %s" % (vr(d, 4), vr(A, 4), vr(B, 4), c))


def round_bf16(a, dst, src, tmp):
    a.I("v_cvt_pk_bf16_f32 %s, %s, %s" % (vr(tmp), vr(src), vr(src)))
    a.I("v_lshlrev_b32 %s, 16, %s" % (vr(dst), vr(tmp)))


def ln_finish(a, vsum, vsq, vmean, vrstd, t0, t1):
    a.I("v_mul_f32 %s, %s, %s" % (vr(vmean), fhex(1.0 / 512), vr(vsum)))
    a.I("v_mul_f32 %s, %s, %s" % (vr(t0), fhex(1.0 / 512), vr(vsq)))
    a.I("v_fma_f32 %s, -%s, %s, %s" % (vr(t0), vr(vmean), vr(vmean), vr(t0)))
    a.I("v_max_f32 %s, 0, %s" % (vr(t0), vr(t0)))
    round_bf16(a, t0, t0, t1)
    a.I("v_add_f32 %s, %s, %s" % (vr(t0), fhex(1e-5), vr(t0)))
    round_bf16(a, t0, t0, t1)
    a.I("v_sqrt_f32 %s, %s" % (vr(t0), vr(t0)))
    round_bf16(a, t0, t0, t1)
    a.I("v_rcp_f32 %s, %s" % (vr(vrstd), vr(t0)))
    round_bf16(a, vmean, vmean, t1)


def p1(a, sc=""):
    R = Regs(4)
    vT = R.alloc(8)
    vBC = R.alloc(16, 4)
    vBS = R.alloc(16, 4)
    vFr = R.alloc(8, 4)
    vFi = R.alloc(8, 4)
    vFn = R.alloc(8, 4)
    vAcc = R.alloc(32, 4)
    vA = R.alloc(32, 4)
    vSt = R.alloc(32, 4)
    vAddr = R.alloc(1)
    vSA = R.alloc(1)
    vSum = R.alloc(2)
    vRs = R.alloc(8, 4)
    vO = R.alloc(4)
    a.c("P1: DMA x rows")
    a.I("s_lshl_b32 s%d, s%d, 9" % (S_T0, S_WAVE))
    a.I("s_add_u32 s%d, s%d, s%d" % (S_T0, S_T0, S_S2))
    a.I("s_lshl_b32 s%d, s%d, 10" % (S_T0, S_T0))
    a.I("v_lshl_add_u32 %s, v%d, 4, s%d" % (vr(vAddr), V_LANE, S_T0))
    a.I("s_mul_i32 s%d, s%d, %d" % (S_T0 + 1, S_WAVE, 8 * XP))
    a.I("s_add_u32 s%d, s%d, %d" % (S_T0 + 1, S_T0 + 1, L_X))
    for i in range(8):
        a.I("s_add_u32 m0, s%d, %d" % (S_T0 + 1, i * XP))
        a.I("global_load_lds_dwordx4 %s, s[%d:%d]" % (vr(vAddr), S_X, S_X + 1))
        if i < 7:
            a.I("v_add_u32 %s, 0x10000, %s" % (vr(vAddr), vr(vAddr)))
    a.c("P1: row-DFT table: j = 64q + 4m + c (sigma 0 -> 256)")
    vJ, vBase = vT + 6, vT + 7
    a.I("s_lshl_b32 s%d, s%d, 6" % (S_T0, S_Q))
    a.I("s_add_u32 s%d, s%d, s%d" % (S_T0, S_T0, S_WAVE))
    a.I("v_lshl_add_u32 %s, v%d, 2, s%d" % (vr(vJ), V_L15, S_T0))
    a.I("v_cmp_eq_u32 vcc, 0, %s" % vr(vJ))
    a.I("v_mov_b32 %s, 0x100" % vr(vBase))
    a.I("v_cndmask_b32 %s, %s, %s, vcc" % (vr(vJ), vr(vJ), vr(vBase)))
    a.I("v_cvt_f32_u32 %s, %s" % (vr(vJ), vr(vJ)))
    a.I("v_mul_f32 %s, %s, %s" % (vr(vJ), fhex(1.0 / 512), vr(vJ)))
    a.I("v_lshlrev_b32 %s, 3, v%d" % (vr(vBase), V_G))
    a.I("v_cvt_f32_u32 %s, %s" % (vr(vBase), vr(vBase)))
    a.I("v_mul_f32 %s, %s, %s" % (vr(vBase), vr(vJ), vr(vBase)))
    for ks in range(4):
        sincos_pack(a, vT, vJ, vBase, [32 * ks + e for e in range(8)], vBC + 4 * ks, vBS + 4 * ks, True)
    a.c("P1: F' table: k1 = 16t'+l15, s = s2 + 256 g + 64 e'")
    for tp in range(2):
        a.I("v_add_u32 %s, %d, v%d" % (vr(vJ), 16 * tp, V_L15))
        a.I("v_cvt_f32_u32 %s, %s" % (vr(vJ), vr(vJ)))
        a.I("v_mul_f32 %s, %s, %s" % (vr(vJ), fhex(1.0 / 2048), vr(vJ)))
        a.I("v_lshl_add_u32 %s, v%d, 8, s%d" % (vr(vBase), V_G, S_S2))
        a.I("v_cvt_f32_u32 %s, %s" % (vr(vBase), vr(vBase)))
        a.I("v_mul_f32 %s, %s, %s" % (vr(vBase), vr(vJ), vr(vBase)))
        Ks = [64 * e for e in range(4)] + [64 * (16 + e) for e in range(4)]
        sincos_pack(a, vT, vJ, vBase, Ks, vFr + 4 * tp, vFi + 4 * tp, True, vFn + 4 * tp)
    a.I("v_mul_u32_u24 %s, %d, v%d" % (vr(vAddr), XP, V_L15))
    a.I("v_lshl_add_u32 %s, v%d, 4, %s" % (vr(vAddr), V_G, vr(vAddr)))
    a.I("v_add_u32 %s, %d, %s" % (vr(vAddr), L_X, vr(vAddr)))
    a.I("v_lshrrev_b32 %s, 3, v0" % vr(vSA))
    a.I("v_mul_u32_u24 %s, %d, %s" % (vr(vSA), XP, vr(vSA)))
    a.I("v_and_b32 %s, 7, v0" % vr(vT))
    a.I("v_lshl_add_u32 %s, %s, 4, %s" % (vr(vSA), vr(vT), vr(vSA)))
    a.I("v_add_u32 %s, %d, %s" % (vr(vSA), L_X, vr(vSA)))
    a.I("s_waitcnt vmcnt(0)")
    a.I("s_barrier")
    a.c("P1: stats")
    for i in range(8):
        a.I("ds_read_b128 %s, %s offset:%d" % (vr(vSt + 4 * i, 4), vr(vSA), i * 128))
    a.I("v_mov_b32 %s, 0" % vr(vSum))
    a.I("v_mov_b32 %s, 0" % vr(vSum + 1))
    for i in range(32):
        a.I("v_dot2c_f32_bf16 %s, s%d, %s" % (vr(vSum), S_ONES, vr(vSt + i)))
        a.I("v_dot2c_f32_bf16 %s, %s, %s" % (vr(vSum + 1), vr(vSt + i), vr(vSt + i)))
    for ctl in ("quad_perm:[1,0,3,2]", "quad_perm:[2,3,0,1]", "row_half_mirror"):
        for k in range(2):
            a.I("v_add_f32_dpp %s, %s, %s %s row_mask:0xf bank_mask:0xf" % (vr(vSum + k), vr(vSum + k), vr(vSum + k), ctl))
    ln_finish(a, vSum, vSum + 1, vT, vT + 1, vT + 2, vT + 3)
    a.I("v_lshrrev_b32 %s, 3, v0" % vr(vT + 2))
    a.I("v_lshlrev_b32 %s, 2, %s" % (vr(vT + 2), vr(vT + 2)))
    a.I("v_add_u32 %s, %d, %s" % (vr(vT + 2), L_R, vr(vT + 2)))
    a.I("ds_write_b32 %s, %s" % (vr(vT + 2), vr(vT + 1)))
    st = a.save()
    for c in range(4):
        if c < 3:
            a.I("s_cmp_eq_u32 s%d, %d" % (S_WAVE, c + 1))
            a.I("s_cbranch_scc1 P1_C%d" % (c + 1))
    RP, RM, IP, IM = 0, 1, 2, 3
    plan = {
        0: [(RP, IP), (RP, IP), (RP, IP), (RP, IP)],
        2: [(RP, IP), (RM, IM), (RP, IP), (RM, IM)],
        1: [(RP, IP), (IM, RP), (RM, IM), (IP, RM)],
        3: [(RP, IP), (IP, RM), (RM, IM), (IM, RP)],
    }
    for c in range(4):
        a.restore(st)
        a.label("P1_C%d" % c)
        started = set()
        seq = [(q, ks, t) for q in range(4) for ks in range(4) for t in range(2)]
        NBUF = 8

        def rd(i):
            q, ks, t = seq[i]
            a.I("ds_read_b128 %s, %s offset:%d" % (vr(vA + 4 * (i % NBUF), 4), vr(vAddr), t * 16 * XP + q * 256 + ks * 64))
        for i in range(NBUF - 1):
            rd(i)
        for i, (q, ks, t) in enumerate(seq):
            if i + NBUF - 1 < len(seq):
                rd(i + NBUF - 1)
            A = vA + 4 * (i % NBUF)
            for which, B in ((0, vBC + 4 * ks), (1, vBS + 4 * ks)):
                acc = plan[c][q][which]
                d = vAcc + 16 * t + 4 * acc
                key = (t, acc)
                mfma16(a, d, A, B, d if key in started else None)
                started.add(key)
        a.I("s_waitcnt lgkmcnt(0)")
        a.I("s_barrier")
        a.I("v_lshlrev_b32 %s, 4, v%d" % (vr(vT), V_G))
        a.I("v_add_u32 %s, %d, %s" % (vr(vT), L_R, vr(vT)))
        for t in range(2):
            a.I("ds_read_b128 %s, %s offset:%d" % (vr(vRs + 4 * t, 4), vr(vT), 64 * t))
        for (P, M, dst) in ((RP, RM, vA), (IP, IM, vA + 4)):
            for t in range(2):
                p = vAcc + 16 * t + 4 * P
                m = vAcc + 16 * t + 4 * M
                if c != 0:
                    for r in range(4):
                        a.I("v_sub_f32 %s, %s, %s" % (vr(p + r), vr(p + r), vr(m + r)))
                for r in range(4):
                    a.I("v_mul_f32 %s, %s, %s" % (vr(p + r), vr(p + r), vr(vRs + 4 * t + r)))
                a.I("v_cvt_pk_bf16_f32 %s, %s, %s" % (vr(dst + 2 * t), vr(p), vr(p + 1)))
                a.I("v_cvt_pk_bf16_f32 %s, %s, %s" % (vr(dst + 2 * t + 1), vr(p + 2), vr(p + 3)))
        if c < 3:
            a.flush_hazards()
            a.I("s_branch P1_JOIN")
    a.label("P1_JOIN")
    Cr, Ci = vA, vA + 4
    vTr, vTi = vAcc, vAcc + 8
    for tp in range(2):
        mfma16(a, vTr + 4 * tp, Cr, vFr + 4 * tp)
        mfma16(a, vTi + 4 * tp, Cr, vFi + 4 * tp)
    for tp in range(2):
        mfma16(a, vTr + 4 * tp, Ci, vFn + 4 * tp, vTr + 4 * tp)
        mfma16(a, vTi + 4 * tp, Ci, vFr + 4 * tp, vTi + 4 * tp)
    a.I("s_lshl_b32 s%d, s%d, 10" % (S_T0, S_S2))
    a.I("s_lshl_b32 s%d, s%d, 8" % (S_T0 + 1, S_Q))
    a.I("s_add_u32 s%d, s%d, s%d" % (S_T0, S_T0, S_T0 + 1))
    a.I("s_lshl_b32 s%d, s%d, 6" % (S_T0 + 1, S_WAVE))
    a.I("s_add_u32 s%d, s%d, s%d" % (S_T0, S_T0, S_T0 + 1))
    a.I("v_lshlrev_b32 %s, 16, v%d" % (vr(vAddr), V_L15))
    a.I("v_lshl_add_u32 %s, v%d, 4, %s" % (vr(vAddr), V_G, vr(vAddr)))
    a.I("v_add_u32 %s, s%d, %s" % (vr(vAddr), S_T0, vr(vAddr)))
    a.I("v_add_u32 %s, 0x100000, %s" % (vr(vSA), vr(vAddr)))
    for tp in range(2):
        o = vA + 8 + 4 * tp
        for r in range(4):
            a.I("v_cvt_pk_bf16_f32 %s, %s, %s" % (vr(o + r), vr(vTr + 4 * tp + r), vr(vTi + 4 * tp + r)))
        a.I("global_store_dwordx4 %s, %s, s[%d:%d] %s" % (vr(vAddr if tp == 0 else vSA), vr(o, 4), S_T, S_T + 1, sc))


def kernel_wrap(name, body, lds):
    a = Asm()
    a.raw(".globl %s" % name)
    a.raw(".p2align 8")
    a.raw(".type %s,@function" % name)
    a.raw("%s:" % name)
    end = name + "_END"
    prologue(a, end)
    body(a)
    a.label(end)
    a.I("s_endpgm")
    return a


def descriptor(name, nv=256, acc=256, ns=102):
    return "\n".join([
        ".p2align 6",
        ".amdhsa_kernel %s" % name,
        "  .amdhsa_next_free_vgpr %d" % nv,
        "  .amdhsa_next_free_sgpr %d" % ns,
        "  .amdhsa_accum_offset %d" % acc,
        "  .amdhsa_group_segment_fixed_size 0",
        "  .amdhsa_kernarg_size 80",
        "  .amdhsa_user_sgpr_count 2",
        "  .amdhsa_user_sgpr_kernarg_segment_ptr 1",
        "  .amdhsa_system_sgpr_workgroup_id_x 1",
        "  .amdhsa_float_denorm_mode_32 3",
        ".end_amdhsa_kernel"]) + "\n"


def build_multi(phases, path):
    import gen_phases
    table = {"p1": p1}
    table.update(gen_phases.PHASES)
    head = []
    for p in phases:
        head.append("; @launch kernel=%s_kernel grid=(256,1,1) block=(256,1,1) lds=%d" % (p, LDS_BYTES))
    text = "\n".join(head) + "\n" + '.amdgcn_target "amdgcn-amd-amdhsa--gfx950"\n.text\n'
    desc = '.section .rodata,"a"\n'
    seen = []
    for p in phases:
        if p in seen:
            continue
        seen.append(p)
        a = kernel_wrap(p + "_kernel", table[p], LDS_BYTES)
        text += a.text()
        desc += descriptor(p + "_kernel", nv=512, acc=256)
    open(path, "w").write(text + desc)


if __name__ == "__main__":
    build_multi(sys.argv[2].split(","), sys.argv[1])
```
